```python
import torch

def _softmax(x, axis=-1):
    return torch.softmax(x, dim=axis)

def _gelu(x):
    return torch.nn.functional.gelu(x, approximate='tanh')

def _silu(x):
    return torch.nn.functional.silu(x)

def _sigmoid(x):
    return torch.sigmoid(x)

def _layernorm(x, axis=-1, eps=1e-05):
    m = x.mean(dim=axis, keepdim=True)
    v = x.var(dim=axis, keepdim=True, unbiased=False)
    return (x - m) / torch.sqrt(v + eps)

def _scatter_add(tgt, idx, src, axis=0):
    return tgt.clone().index_add_(axis, idx, src)

def _segment_sum(src, seg, n):
    out = torch.zeros((n,) + src.shape[1:], dtype=src.dtype)
    return out.index_add_(0, seg, src)

def _pad(x, pw):
    flat = tuple((v for pair in reversed(pw) for v in pair))
    return torch.nn.functional.pad(x, flat)
kernel_name = 'adaLN_cond__sliding_block_cached__dense_activation_relu__decode'

def setup_inputs():

    _w = lambda a: (lambda t: t.to(torch.bfloat16) if t.is_floating_point() else t)(torch.as_tensor(a))

    def _A_setup():
        B, Sq, D = (2, 1, 1024)
        Hq, Hkv, Sk, Dh = (32, 4, 32768, 128)
        assert Hq % Hkv == 0, (Hq, Hkv)
        return {'x': _w((lambda *s: torch.randn(*s, dtype=torch.bfloat16) * 0.05)(B, Sq, D)), 'k_cache': _w((lambda *s: torch.randn(*s, dtype=torch.bfloat16) * 0.4)(B, Hkv, Sk, Dh)), 'v_cache': _w((lambda *s: torch.randn(*s, dtype=torch.bfloat16) * 0.8)(B, Hkv, Sk, Dh)), 'wq': _w((lambda *s: torch.randn(*s, dtype=torch.bfloat16) * 0.4)(D, Hq * Dh) * D ** (-0.5)), 'wo': _w((lambda *s: torch.randn(*s, dtype=torch.bfloat16) * 0.8)(Hq * Dh, D) * (Hq * Dh) ** (-0.5))}
    _A_in = _A_setup()

    def _B_setup():
        B, S, D, Dff = (2, 1, 1024, 3584)
        return {'x': _w((lambda *s: torch.randn(*s, dtype=torch.bfloat16) * 0.05)(B, S, D)), 'w1': _w((lambda *s: torch.randn(*s, dtype=torch.bfloat16) * 0.05)(D, Dff)), 'w2': _w((lambda *s: torch.randn(*s, dtype=torch.bfloat16) * 0.05)(Dff, D))}
    _B_in = _B_setup()
    return {'A_x': _A_in['x'], 'A_k_cache': _A_in['k_cache'], 'A_v_cache': _A_in['v_cache'], 'A_wq': _A_in['wq'], 'A_wo': _A_in['wo'], 'B_x': _B_in['x'], 'B_w1': _B_in['w1'], 'B_w2': _B_in['w2'], 'c': _w((lambda *s: torch.randn(*s, dtype=torch.bfloat16) * 0.4)(2, 1024) * 8.0), 'w_mod': _w((lambda *s: torch.randn(*s, dtype=torch.bfloat16) * 0.4)(1024, 6 * 1024) * 1024 ** (-0.5) * 8.0)}

def reference(A_x, A_k_cache, A_v_cache, A_wq, A_wo, B_x, B_w1, B_w2, c, w_mod):

    def _A_ref(x, k_cache, v_cache, wq, wo):
        B, Sq, D = x.shape
        Hq, Dh = (32, 128)
        Hkv, Sk = (k_cache.shape[1], k_cache.shape[2])
        W = min(4096, max(256, Sk // 4))
        rep = Hq // Hkv
        q = (lambda x, *d: x.permute(*d))((x @ wq).reshape(B, Sq, Hq, Dh), 0, 2, 1, 3)
        k = (lambda x, n, axis: torch.repeat_interleave(x, n, dim=axis))(k_cache[:, :, Sk - W:, :], rep, axis=1)
        v = (lambda x, n, axis: torch.repeat_interleave(x, n, dim=axis))(v_cache[:, :, Sk - W:, :], rep, axis=1)
        scores = torch.einsum('bhqd,bhkd->bhqk', q, k) * Dh ** (-0.5)
        p = _softmax(scores, axis=-1)
        o = torch.einsum('bhqk,bhkd->bhqd', p, v)
        return (lambda x, *d: x.permute(*d))(o, 0, 2, 1, 3).reshape(B, Sq, Hq * Dh) @ wo

    def _B_ref(x, w1, w2):
        h = torch.einsum('bsd,df->bsf', x, w1)
        zero = torch.zeros_like(h)
        h = torch.maximum(h, zero)
        return torch.einsum('bsf,fd->bsd', h, w2)
    x = A_x
    mod = (_silu(c) @ w_mod).reshape(c.shape[0], 6, 1, -1)
    sa, ca, ga, sb, cb, gb = (mod[:, 0].clone(), mod[:, 1].clone(), mod[:, 2].clone(), mod[:, 3].clone(), mod[:, 4].clone(), mod[:, 5].clone())
    h = _layernorm(x, axis=-1) * (1 + ca) + sa
    x = x + ga * _A_ref(h, A_k_cache, A_v_cache, A_wq, A_wo)
    h = _layernorm(x, axis=-1) * (1 + cb) + sb
    x = x + gb * _B_ref(h, B_w1, B_w2)
    return x
```

```python
import re

TRANS = ('v_exp_f32', 'v_log_f32', 'v_rcp_f32', 'v_rsq_f32', 'v_sqrt_f32', 'v_sin_f32', 'v_cos_f32')

def regs_of(tok):
    tok = tok.strip()
    tok = tok.lstrip('-')
    m = re.fullmatch(r'abs\((.*)\)|\|(.*)\|', tok)
    if m: tok = m.group(1) or m.group(2)
    m = re.fullmatch(r'([vsa])(\d+)', tok)
    if m: return [(m.group(1), int(m.group(2)))]
    m = re.fullmatch(r'([vsa])\[(\d+):(\d+)\]', tok)
    if m: return [(m.group(1), i) for i in range(int(m.group(2)), int(m.group(3)) + 1)]
    if tok == 'vcc': return [('s', 106), ('s', 107)]
    if tok == 'exec': return [('s', 126), ('s', 127)]
    if tok == 'm0': return [('s', 124)]
    return []

class Ins:
    def __init__(self, text):
        self.text = text
        t = text.split(';')[0].strip()
        self.label = t.endswith(':')
        self.directive = t.startswith('.')
        self.op = t.split()[0] if t else ''
        rest = t[len(self.op):].strip()
        ops = []; cur = ''; d = 0
        for ch in rest:
            if ch == '[': d += 1
            if ch == ']': d -= 1
            if ch == ',' and d == 0: ops.append(cur.strip()); cur = ''
            else: cur += ch
        if cur.strip(): ops.append(cur.strip())
        mods = ''
        if ops:
            parts = ops[-1].split(None, 1)
            ops[-1] = parts[0]
            mods = parts[1] if len(parts) > 1 else ''
        self.ops = ops; self.mods = mods
        op = self.op
        self.mfma = op.startswith('v_mfma') or op.startswith('v_smfmac')
        self.valu = op.startswith('v_') and not self.mfma
        self.trans = any(op.startswith(x) for x in TRANS)
        self.dot = op.startswith('v_dot')
        self.dpp = '_dpp' in op
        self.permlane = op.startswith('v_permlane')
        self.readlane = op.startswith('v_readlane') or op.startswith('v_readfirstlane')
        self.vmem = op.startswith(('buffer_', 'global_', 'flat_'))
        self.ds = op.startswith('ds_')
        self.salu = op.startswith('s_')
        self.lds_dma = self.vmem and (' lds' in (' ' + mods) or '_lds_' in op)
        W = []; R = []
        rl = [regs_of(o) for o in ops]
        if self.valu or self.mfma:
            if rl:
                W += rl[0]
                start = 1
                if op.startswith(('v_add_co', 'v_sub_co', 'v_addc_co', 'v_subb_co', 'v_div_scale', 'v_mad_u64')):
                    W += rl[1]; start = 2
                for r in rl[start:]: R += r
                if self.permlane: W += rl[1]; R += rl[0]
                if op.startswith(('v_fmac', 'v_dot2c', 'v_mac')) or self.dpp: R += rl[0]
                if op.startswith('v_cmpx'): W += regs_of('exec')
        elif self.vmem:
            if 'load' in op and not self.lds_dma:
                W += rl[0]
                for r in rl[1:]: R += r
            elif 'atomic' in op and 'sc0' in mods and op.startswith('global'):
                W += rl[0]
                for r in rl[1:]: R += r
            else:
                for r in rl: R += r
        elif self.ds:
            if op.startswith(('ds_read', 'ds_bpermute', 'ds_permute', 'ds_swizzle')) or '_rtn' in op:
                W += rl[0]
                for r in rl[1:]: R += r
            else:
                for r in rl: R += r
        elif self.salu:
            if op.startswith(('s_cmp', 's_cbranch', 's_branch', 's_waitcnt', 's_nop', 's_barrier', 's_sleep', 's_endpgm', 's_setprio', 's_bitcmp')):
                for r in rl: R += r
            elif rl:
                W += rl[0]
                for r in rl[1:]: R += r
                if 'saveexec' in op: W += regs_of('exec')
        self.W = set(W); self.R = set(R)
        self.srcC = set(rl[3]) if self.mfma and len(rl) > 3 else set()
        self.srcAB = (set(rl[1]) | set(rl[2])) if self.mfma else set()
        if op.startswith('v_smfmac'):
            self.srcAB |= set(rl[3]); self.srcC = set(rl[0]); self.R |= set(rl[0])
        self.passes = 0
        if self.mfma:
            self.passes = 8 if '32x32' in op else 4
        self.wide_store = self.vmem and 'store' in op and ('x4' in op or 'x3' in op)
        self.store_data = set(rl[0]) if (self.wide_store and op.startswith('buffer')) else (set(rl[1]) if self.wide_store else set())
    def states(self):
        if self.label or self.directive or not self.op: return 0
        if self.op == 's_nop': return int(self.ops[0], 0) + 1
        return 1

def need(p, c):
    n = 0
    vW = {r for r in p.W if r[0] in 'va'}
    sW = {r for r in p.W if r[0] == 's'}
    if p.valu:
        if c.dpp and (vW & c.R): n = max(n, 2)
        if c.permlane and (vW & c.R): n = max(n, 2)
        if c.readlane and (vW & c.R): n = max(n, 1)
        if c.mfma and (vW & c.R): n = max(n, 2)
        if p.trans and c.valu and not c.trans and (vW & c.R): n = max(n, 1)
        if p.trans and (c.mfma) and (vW & c.R): n = max(n, 2)
        if p.dot and (c.valu or c.vmem or c.ds or c.mfma) and (vW & (c.R | c.W)):
            same = c.op == p.op and len(c.ops) > 3 and set(regs_of(c.ops[3])) == vW and not (vW & (set(regs_of(c.ops[1])) | set(regs_of(c.ops[2]))))
            if not same: n = max(n, 3)
        if sW:
            if c.valu and (sW & c.R): n = max(n, 4 if (c.op.startswith(('v_readlane', 'v_writelane'))) else 2)
            if c.valu and c.op.startswith(('v_cndmask', 'v_addc', 'v_subb', 'v_div_fmas')) and (('s', 106) in sW): n = max(n, 4 if 'div_fmas' in c.op else 2)
            if c.vmem and (sW & c.R): n = max(n, 5)
            if ('s', 126) in sW:
                if c.dpp: n = max(n, 5)
                if c.mfma or c.permlane or c.readlane: n = max(n, 4)
        if '_sdwa' in p.op and c.valu and (vW & (c.R | c.W)): n = max(n, 1)
    if p.mfma:
        big = {4: 8, 8: 12}[p.passes]
        if c.mfma:
            if vW & c.srcAB: n = max(n, big)
            if vW & c.srcC:
                if not (c.srcC == vW and c.passes == p.passes): n = max(n, {4: 6, 8: 10}[p.passes])
            elif vW & c.W: n = max(n, big)
        elif (c.valu or c.vmem or c.ds) and (vW & (c.R | c.W)): n = max(n, big)
        if c.valu and (p.srcC & c.W): n = max(n, {4: 3, 8: 7}[p.passes])
    if p.salu and ('s', 124) in p.W and (c.lds_dma or 'addtid' in c.op): n = max(n, 1)
    if p.wide_store and (p.store_data & c.W): n = max(n, 2 if c.valu else 1)
    return n

def pad_hazards(lines):
    out = []
    for t in lines:
        c = Ins(t)
        if c.op and not c.label and not c.directive:
            dist = 0; req = 0
            for p in reversed(out):
                if dist >= 20: break
                if p.op and not p.label and not p.directive:
                    k = need(p, c)
                    if k > dist: req = max(req, k - dist)
                dist += p.states()
            while req > 0:
                k = min(req, 16)
                out.append(Ins(f's_nop {k-1}')); req -= k
        out.append(c)
    return [i.text for i in out]
```

```python
import sys
from asmlib import pad_hazards

KNAME = 'adaLN_cond__sliding_block_cached__dense_activation_relu__decode_kernel'

MODP = 0x1000
QP   = 0x80000
OP   = 0x100000
MLP  = 0x180000
ATP  = 0x1A0000
HIDP = 0x200000
HTERM = 28 * 8 * 1024
STP  = 0x2C0000
OUTP = 0x300000
PROF = 0x400000
WS_BYTES = 0x800000

RSTR = 1088; RBUF = 8 * RSTR
L_K = 0; L_V = 65536; L_RED = 131072; L_Q = L_RED + RBUF; L_PX = L_Q + 2304; L_MAX = L_PX + 8192
L_SUM = L_MAX + 256; L_STAT = L_SUM + 256; L_END = L_STAT + 128
LDS_BYTES = (L_END + 255) // 256 * 256

LOG2E = 0x3fb8aa3b
NLOG2E = 0xbfb8aa3b
SCALE = 0x3db504f3
SPIN_MAX = 30000

class G:
    def __init__(self, cfg):
        self.L = []; self.cfg = cfg; self.vm = []; self.nlab = 0
    def A(self, s):
        for line in s.split('\n'):
            line = line.strip()
            if line: self.L.append(line)
    def lab(self, p):
        self.nlab += 1; return f'L_{p}_{self.nlab}'
    def issued(self, name): self.vm.append(name)
    def wait(self, name):
        idx = [i for i, n in enumerate(self.vm) if n == name]
        if not idx: return
        n = len(self.vm) - 1 - idx[-1]
        self.A(f's_waitcnt vmcnt({n})'); self.vm = self.vm[idx[-1] + 1:]
    def window(self, win):
        if win and len(self.vm) >= win:
            self.A(f's_waitcnt vmcnt({win-1})'); self.vm = self.vm[len(self.vm) - (win - 1):] if win > 1 else []
    def waitall(self):
        self.A('s_waitcnt vmcnt(0)'); self.vm = []
    def stamp(self, k):
        if self.cfg.get('prof'):
            self.A(f's_memrealtime s[{40+2*k}:{41+2*k}]')
            self.A('s_waitcnt lgkmcnt(0)')

VL, VKQ, VN, VB, VJJ = 1, 2, 3, 4, 5
VM = [6, 7, 8, 9]
VTAG, VG16, VRA, VRR, VPUB, VT = 10, 11, 12, 13, 14, 15
VF = [16, 20]
VACC = [24, 28]
VD = 32
VS = 64
VX = 68
VP = 76
SW, SXC, SU, STAG = 36, 37, 38, 39
S_WS, S_MOD, S_A, S_B, S_C, S_X, S_CC, S_OUT = 4, 8, 12, 16, 20, 24, 28, 32
ST0, ST1, ST2, ST3 = 90, 91, 92, 93
SMASK = 94
SHI = 95
SCNT = 96
SPOLL = 97
SEX = 98

def srd(g, d, ptr, size):
    g.A(f's_mov_b32 s{d}, s{ptr}\ns_mov_b32 s{d+1}, s{ptr+1}\ns_mov_b32 s{d+2}, {size:#x}\ns_mov_b32 s{d+3}, 0x20000')

def wload(g, name, dst, vaddr, srdn, soff, imm=0, win=0):
    g.window(win)
    so = '0'
    if soff:
        g.A(f's_mov_b32 s{ST0}, {soff:#x}'); so = f's{ST0}'
    o = f' offset:{imm}' if imm else ''
    g.A(f'buffer_load_dwordx4 v[{dst}:{dst+3}], v{vaddr}, s[{srdn}:{srdn+3}], {so} offen{o} nt')
    g.issued(name)

def rb_pair(g, a, b, t):
    g.A(f'v_cvt_pk_bf16_f32 v{t}, v{a}, v{b}\nv_lshlrev_b32 v{a}, 16, v{t}\nv_and_b32 v{b}, s{SHI}, v{t}')

def rb_list(g, regs, temps):
    ts = []
    for k in range(0, len(regs), 2):
        t = temps[(k // 2) % len(temps)]
        rb_pair(g, regs[k], regs[k+1], t)

def dpp_reduce8(g, regs, op='add'):
    for mode in ['quad_perm:[1,0,3,2]', 'quad_perm:[2,3,0,1]', 'row_half_mirror']:
        for r in regs:
            g.A(f'v_{op}_f32_dpp v{r}, v{r}, v{r} {mode} row_mask:0xf bank_mask:0xf')

def gemv(g, xdup, wregs, accs):
    n = len(xdup)
    def build(i):
        f = VF[i & 1]
        for r in range(4): g.A(f'v_and_b32 v{f+r}, v{VM[r]}, v{xdup[i]}')
    build(0)
    for i in range(n):
        if i + 1 < n: build(i + 1)
        f = VF[i & 1]
        for c, acc in enumerate(accs):
            cin = '0' if i == 0 else f'v[{acc}:{acc+3}]'
            w = wregs[i][c]
            g.A(f'v_mfma_f32_16x16x32_bf16 v[{acc}:{acc+3}], v[{f}:{f+3}], v[{w}:{w+3}], {cin}')

def slot_off(slot):
    return (slot - 1) * RBUF

def red_add(g, accs, slot):
    for c, acc in enumerate(accs):
        if slot == 0:
            g.A(f'v_add_u32 v{VT}, {L_RED}, v{VRA}\nds_write_b128 v{VT}, v[{acc}:{acc+3}]')
        else:
            g.A(f'ds_write_b128 v{VRA}, v[{acc}:{acc+3}] offset:{slot_off(slot + c)}')

def publish(g, slot, nacc, sbase, stride):
    skip = g.lab('pub')
    if nacc == 1: g.A(f's_cmp_ge_u32 s{SW}, 4\ns_cbranch_scc1 {skip}')
    d = VD
    if slot == 0:
        g.A(f'v_add_u32 v{VT}, {L_RED}, v{VRR}'); a = VT; o = 0
    else:
        a = VRR; o = slot_off(slot)
    g.A(f'ds_read_b128 v[{d}:{d+3}], v{a} offset:{o}')
    g.A(f'ds_read_b128 v[{d+4}:{d+7}], v{a} offset:{o + 4*RSTR}')
    if nacc > 1:
        g.A(f's_lshr_b32 s{ST0}, s{SW}, 2\ns_mul_i32 s{ST0}, s{ST0}, {stride}\ns_add_u32 s{sbase}, s{sbase}, s{ST0}')
    g.A('s_waitcnt lgkmcnt(0)')
    for i in range(4): g.A(f'v_add_f32 v{d+i}, v{d+i}, v{d+4+i}')
    for mode in ['quad_perm:[1,0,3,2]', 'quad_perm:[2,3,0,1]']:
        for i in range(4): g.A(f'v_add_f32_dpp v{d+i}, v{d+i}, v{d+i} {mode} row_mask:0xf bank_mask:0xf')
    g.A(f'v_and_or_b32 v{d}, v{d}, s{SMASK}, v{VTAG}\nv_and_or_b32 v{d+3}, v{d+3}, s{SMASK}, v{VTAG}')
    g.A(f's_mov_b32 exec_lo, 0x11111111\ns_mov_b32 exec_hi, 0x11111111')
    g.A(f'buffer_store_dwordx4 v[{d}:{d+3}], v{VPUB}, s[{S_WS}:{S_WS+3}], s{sbase} offen sc1')
    g.A('s_mov_b64 exec, -1\ns_nop 0')
    g.A(f'{skip}:')

def poll(g, loads, sleep=None):
    top = g.lab('poll'); done = g.lab('ok')
    if sleep is None: sleep = g.cfg.get('sleep', 1)
    g.A(f's_mov_b32 s{SCNT}, 0')
    g.A(f'{top}:')
    for dst, n, va, so, imm in loads:
        sfx = {4: 'x4', 2: 'x2'}[n]
        o = f' offset:{imm}' if imm else ''
        g.A(f'buffer_load_dword{sfx} v[{dst}:{dst+n-1}], v{va}, s[{S_WS}:{S_WS+3}], {"s%d" % so if so is not None else "0"} offen{o} sc1')
    g.A(f's_add_u32 s{SCNT}, s{SCNT}, 1')
    first = True
    for k, (dst, n, va, so, imm) in enumerate(loads):
        g.A(f's_waitcnt vmcnt({len(loads)-1-k})')
        for r in (dst, dst + n - 1):
            if first: g.A(f'v_xor_b32 v{VT}, v{r}, v{VTAG}'); first = False
            else: g.A(f'v_bitop3_b32 v{VT}, v{VT}, v{r}, v{VTAG} bitop3:0xf6')
    g.A(f'v_and_b32 v{VT}, 0xff, v{VT}\nv_cmp_ne_u32 vcc, 0, v{VT}')
    g.A(f's_cbranch_vccz {done}')
    if sleep: g.A(f's_sleep {sleep}')
    g.A(f's_cmp_lt_u32 s{SCNT}, {SPIN_MAX}\ns_cbranch_scc1 {top}')
    g.A(f'{done}:')
    if g.cfg.get('prof'): g.A(f's_lshl_b32 s{SPOLL}, s{SPOLL}, 6\ns_min_u32 s{SCNT}, s{SCNT}, 63\ns_or_b32 s{SPOLL}, s{SPOLL}, s{SCNT}')
    g.vm = []

def barrier(g):
    g.A('s_waitcnt lgkmcnt(0)\ns_barrier')

def silu(g, src):
    t = VD
    g.A(f'v_lshlrev_b32 v{t}, 16, v{src}\nv_and_b32 v{t+1}, s{SHI}, v{src}\nv_lshlrev_b32 v{t+2}, 16, v{src+1}\nv_and_b32 v{t+3}, s{SHI}, v{src+1}')
    for i in range(4): g.A(f'v_mul_f32 v{t+4+i}, {NLOG2E:#x}, v{t+i}')
    for i in range(4): g.A(f'v_exp_f32 v{t+4+i}, v{t+4+i}')
    for i in range(4): g.A(f'v_add_f32 v{t+4+i}, 1.0, v{t+4+i}')
    for i in range(4): g.A(f'v_rcp_f32 v{t+4+i}, v{t+4+i}')
    for i in range(4): g.A(f'v_mul_f32 v{t+i}, v{t+i}, v{t+4+i}')
    for i in range(4): g.A(f'v_cvt_pk_bf16_f32 v{VS+i}, v{t+i}, v{t+i}')

def allreduce_kq(g, regs, temps, op='add'):
    for sw in ['v_permlane16_swap_b32', 'v_permlane32_swap_b32']:
        for r, t in zip(regs, temps): g.A(f'v_mov_b32 v{t}, v{r}')
        for r, t in zip(regs, temps): g.A(f'{sw} v{r}, v{t}')
        for r, t in zip(regs, temps): g.A(f'v_{op}_f32 v{r}, v{r}, v{t}')

def ln_scalars(g, s1, s2, t):
    g.A(f'v_mul_f32 v{s1}, 0x3a800000, v{s1}\nv_mul_f32 v{s2}, 0x3a800000, v{s2}')
    g.A(f'v_fma_f32 v{s2}, -v{s1}, v{s1}, v{s2}\nv_max_f32 v{s2}, 0, v{s2}')
    rb_pair(g, s1, s2, t)
    g.A(f'v_add_f32 v{s2}, 0x3727c5ac, v{s2}')
    g.A(f'v_cvt_pk_bf16_f32 v{t}, v{s2}, v{s2}\nv_and_b32 v{s2}, s{SHI}, v{t}')
    g.A(f'v_sqrt_f32 v{s2}, v{s2}')
    g.A(f'v_cvt_pk_bf16_f32 v{t}, v{s2}, v{s2}\nv_and_b32 v{s2}, s{SHI}, v{t}')

def p1_addr(g, va, cg_base):
    g.A(f's_and_b32 s{ST0}, s{SU}, 7\ns_lshl_b32 s{ST0}, s{ST0}, 7\ns_lshl_b32 s{ST1}, s{SW}, 4\ns_add_u32 s{ST0}, s{ST0}, s{ST1}')
    g.A(f's_mul_i32 s{ST0}, s{ST0}, 12288')
    g.A(f's_and_b32 s{ST1}, s{SU}, 8\ns_add_u32 s{ST1}, s{ST1}, s{SXC}\ns_add_u32 s{ST1}, s{ST1}, {cg_base}\ns_lshl_b32 s{ST1}, s{ST1}, 8')
    g.A(f's_add_u32 s{ST0}, s{ST0}, s{ST1}')
    g.A(f'v_mul_u32_u24 v{va}, {4*12288}, v{VKQ}\nv_lshl_add_u32 v{va}, v{VN}, 4, v{va}\nv_add_u32 v{va}, s{ST0}, v{va}')

def p1_pub_base(g, s, cg_base):
    g.A(f's_and_b32 s{s}, s{SU}, 8\ns_add_u32 s{s}, s{s}, s{SXC}\ns_add_u32 s{s}, s{s}, {cg_base}\ns_lshl_b32 s{s}, s{s}, 3')
    g.A(f's_and_b32 s{ST0}, s{SU}, 7\ns_add_u32 s{s}, s{s}, s{ST0}\ns_lshl_b32 s{s}, s{s}, 10\ns_add_u32 s{s}, s{s}, {MODP:#x}')

def tile_addr(g, va, srow, stride, scol):
    g.A(f's_mul_i32 s{srow}, s{srow}, {stride}\ns_add_u32 s{srow}, s{srow}, s{scol}')
    g.A(f'v_mul_u32_u24 v{va}, {4*stride}, v{VKQ}\nv_lshl_add_u32 v{va}, v{VN}, 4, v{va}\nv_add_u32 v{va}, s{srow}, v{va}')

def p1_stage(g, wreg, slot, cg_base):
    gemv(g, [VS + i for i in range(4)], [[wreg + 4 * i] for i in range(4)], [VACC[0]])
    p1_pub_base(g, ST2, cg_base)
    red_add(g, [VACC[0]], slot)
    barrier(g)
    publish(g, slot, 1, ST2, 0)

def finish(g, nst):
    if g.cfg.get('prof'):
        g.A(f's_lshl_b32 s{ST0}, s2, 3\ns_add_u32 s{ST0}, s{ST0}, s{SW}\ns_lshl_b32 s{ST0}, s{ST0}, 6\ns_add_u32 s{ST0}, s{ST0}, {PROF:#x}')
        g.A(f's_getreg_b32 s{ST1}, hwreg(HW_REG_XCC_ID)')
        g.A(f'v_mov_b32 v{VT}, 0\ns_mov_b64 exec, 1')
        for k in range(12):
            g.A(f'v_mov_b32 v{VD}, s{40+2*k}\nbuffer_store_dword v{VD}, v{VT}, s[{S_WS}:{S_WS+3}], s{ST0} offen offset:{4*k}')
        g.A(f'v_mov_b32 v{VD}, s{SPOLL}\nbuffer_store_dword v{VD}, v{VT}, s[{S_WS}:{S_WS+3}], s{ST0} offen offset:48')
        g.A(f'v_mov_b32 v{VD}, s{ST1}\nbuffer_store_dword v{VD}, v{VT}, s[{S_WS}:{S_WS+3}], s{ST0} offen offset:52')
    g.A('s_endpgm')

def prologue(g):
    cfg = g.cfg
    if cfg.get('prof'):
        g.A('s_memrealtime s[40:41]')
    g.A('s_load_dwordx16 s[64:79], s[0:1], 0\ns_load_dwordx8 s[80:87], s[0:1], 64\ns_load_dwordx2 s[88:89], s[0:1], 96')
    g.A('s_cmp_ge_u32 s2, 256\ns_cbranch_scc1 L_exit')
    g.A(f'v_lshrrev_b32 v{VT}, 6, v0\nv_and_b32 v{VL}, 63, v0')
    g.A(f'v_readfirstlane_b32 s{SW}, v{VT}')
    g.A(f'v_lshrrev_b32 v{VKQ}, 4, v{VL}\nv_and_b32 v{VN}, 15, v{VL}\nv_bfe_u32 v{VB}, v{VL}, 3, 1\nv_and_b32 v{VJJ}, 7, v{VL}')
    g.A(f's_and_b32 s{SXC}, s2, 7\ns_bfe_u32 s{SU}, s2, 0x40003')
    g.A(f's_mov_b32 s{SMASK}, 0xffffff00\ns_mov_b32 s{SHI}, 0xffff0000\ns_mov_b32 s{SPOLL}, 0')
    if cfg.get('prof'):
        for k in range(1, 12): g.A(f's_mov_b64 s[{40+2*k}:{41+2*k}], 0')
    g.A('s_waitcnt lgkmcnt(0)')
    g.A(f's_load_dword s{STAG}, s[88:89], 0')
    srd(g, S_MOD, 82, 1024 * 6144 * 2)
    srd(g, S_CC, 80, 4096)
    srd(g, S_X, 64, 4096)
    srd(g, S_WS, 88, WS_BYTES)

def lane_consts(g):
    g.A(f'v_and_b32 v{VT}, 1, v{VJJ}\nv_lshlrev_b32 v{VT}, 4, v{VT}\nv_mov_b32 v{VD}, 0xffff\nv_lshlrev_b32 v{VT}, v{VT}, v{VD}')
    g.A(f'v_lshrrev_b32 v{VD}, 1, v{VJJ}')
    for r in range(4):
        g.A(f'v_cmp_eq_u32 vcc, {r}, v{VD}\nv_cndmask_b32 v{VM[r]}, 0, v{VT}, vcc')
    g.A(f'v_lshlrev_b32 v{VG16}, 10, v{VJJ}\nv_lshl_add_u32 v{VG16}, v{VB}, 9, v{VG16}\nv_lshl_add_u32 v{VG16}, v{VKQ}, 4, v{VG16}')
    g.A(f's_lshl_b32 s{ST0}, s{SW}, 6\nv_add_u32 v{VG16}, s{ST0}, v{VG16}')
    g.A(f'v_and_b32 v{VRA}, 32, v{VL}\nv_lshl_add_u32 v{VRA}, v{VN}, 1, v{VRA}\nv_and_b32 v{VT}, 1, v{VKQ}\nv_add_u32 v{VRA}, v{VRA}, v{VT}\nv_lshlrev_b32 v{VRA}, 4, v{VRA}')
    g.A(f's_mul_i32 s{ST0}, s{SW}, {RSTR}\nv_add_u32 v{VRA}, s{ST0}, v{VRA}')
    g.A(f'v_lshrrev_b32 v{VPUB}, 2, v{VL}\nv_lshlrev_b32 v{VPUB}, 4, v{VPUB}\ns_and_b32 s{ST0}, s{SW}, 3\ns_lshl_b32 s{ST0}, s{ST0}, 8\nv_add_u32 v{VPUB}, s{ST0}, v{VPUB}')
    g.A(f'v_and_b32 v{VT}, 3, v{VL}\nv_mul_u32_u24 v{VT}, {RSTR}, v{VT}\ns_lshr_b32 s{ST0}, s{SW}, 2\ns_mul_i32 s{ST0}, s{ST0}, {RBUF}\nv_add3_u32 v{VRR}, v{VT}, v{VPUB}, s{ST0}')
    g.A('s_waitcnt lgkmcnt(0)')
    g.A(f's_add_u32 s{ST3}, s{STAG}, 1\ns_and_b32 s{ST0}, s{ST3}, 0xff\nv_mov_b32 v{VTAG}, s{ST0}')
    g.A(f's_mov_b32 s{STAG}, s{ST3}')

def small_loads(g, vc, vxr):
    g.A(f'v_lshlrev_b32 v{VT}, 11, v{VB}\nv_lshl_add_u32 v{VT}, v{VKQ}, 3, v{VT}')
    g.A(f's_lshl_b32 s{ST1}, s{SW}, 5\ns_and_b32 s{ST0}, s{SU}, 7\ns_lshl_b32 s{ST0}, s{ST0}, 8\ns_add_u32 s{ST0}, s{ST0}, s{ST1}')
    g.A(f'buffer_load_dwordx2 v[{vc}:{vc+1}], v{VT}, s[{S_CC}:{S_CC+3}], s{ST0} offen'); g.issued('c')
    g.A(f's_lshl_b32 s{ST0}, s{SXC}, 8\ns_add_u32 s{ST0}, s{ST0}, s{ST1}')
    g.A(f'buffer_load_dwordx2 v[{vxr}:{vxr+1}], v{VT}, s[{S_X}:{S_X+3}], s{ST0} offen'); g.issued('xr')

def code_prefetch(g):
    n = g.cfg.get('code_kb', 12)
    if not n: return
    lab = g.lab('pc')
    g.A(f's_getpc_b64 s[{SEX}:{SEX+1}]')
    g.A(f'{lab}:')
    g.A(f's_sub_u32 s{SEX}, s{SEX}, {lab}-{KNAME}\ns_subb_u32 s{SEX+1}, s{SEX+1}, 0')
    g.A(f'v_min_u32 v{VT}, (L_exit-{KNAME})/64, v0\nv_lshlrev_b32 v{VT}, 6, v{VT}')
    g.A(f'global_load_dword v250, v{VT}, s[{SEX}:{SEX+1}]'); g.issued('code')

def prog_A(g):
    cfg = g.cfg
    W1A, WQ, WO, W1B, W2 = 80, 96, 128, 160, 176
    VA1, VAQ, VAO, VA1B, VA2 = 210, 211, 212, 213, 214
    VC, VXR, VXF = 216, 218, 220
    VLN = 236
    srd(g, S_A, 70, 1024 * 4096 * 2)
    p1_addr(g, VA1, 0)
    small_loads(g, VC, VXR)
    for i in range(4): wload(g, 'p1a', W1A + 4 * i, VA1, S_MOD, i * 12288)
    code_prefetch(g)
    g.A(f'v_lshlrev_b32 v{VT}, 11, v{VB}\nv_lshl_add_u32 v{VT}, v{VKQ}, 7, v{VT}\nv_lshl_add_u32 v{VT}, v{VJJ}, 4, v{VT}')
    for t in range(4):
        g.A(f'buffer_load_dwordx4 v[{VXF+4*t}:{VXF+4*t+3}], v{VT}, s[{S_X}:{S_X+3}], 0 offen offset:{t*512}'); g.issued('xf')
    g.A(f's_lshl_b32 s{ST2}, s{SXC}, 7\ns_lshl_b32 s{ST1}, s{SW}, 4\ns_add_u32 s{ST2}, s{ST2}, s{ST1}\ns_lshl_b32 s{ST1}, s{SU}, 9')
    tile_addr(g, VAQ, ST2, 8192, ST1)
    wq_loads = [(i, c) for i in range(4) for c in range(2)]
    nq0 = cfg.get('A_nq0', 4)
    for i, c in wq_loads[:nq0]: wload(g, 'wq', WQ + 8 * i + 4 * c, VAQ, S_A, i * 8192, c * 256)
    lane_consts(g)
    srd(g, S_B, 72, 4096 * 1024 * 2)
    srd(g, S_C, 78, 3584 * 1024 * 2)
    g.wait('c')
    silu(g, VC)
    g.wait('p1a'); g.stamp(1)
    p1_stage(g, W1A, 0, 0); g.stamp(2)
    winA = cfg.get('A_win', 0)
    for i, c in wq_loads[nq0:]: wload(g, 'wq', WQ + 8 * i + 4 * c, VAQ, S_A, i * 8192, c * 256, winA)
    g.A(f's_lshl_b32 s{ST2}, s{SU}, 8\ns_lshl_b32 s{ST1}, s{SW}, 5\ns_add_u32 s{ST2}, s{ST2}, s{ST1}\ns_lshl_b32 s{ST1}, s{SXC}, 8')
    tile_addr(g, VAO, ST2, 2048, ST1)
    g.A(f's_mul_i32 s{ST2}, s{SU}, 224\ns_min_u32 s{ST1}, s{SW}, 6\ns_lshl_b32 s{ST1}, s{ST1}, 5\ns_add_u32 s{ST2}, s{ST2}, s{ST1}\ns_lshl_b32 s{ST1}, s{SXC}, 8')
    tile_addr(g, VA2, ST2, 2048, ST1)
    p1_addr(g, VA1B, 16)
    g.wait('xf')
    s1, s2 = VD, VD + 1
    g.A(f'v_mov_b32 v{s1}, 0\nv_mov_b32 v{s2}, 0\ns_mov_b32 s{ST0}, 0x3f803f80')
    for t in range(16):
        g.A(f'v_dot2_f32_bf16 v{s1}, v{VXF+t}, s{ST0}, v{s1}\nv_dot2_f32_bf16 v{s2}, v{VXF+t}, v{VXF+t}, v{s2}')
    dpp_reduce8(g, [s1, s2])
    allreduce_kq(g, [s1, s2], [VD + 2, VD + 3])
    ln_scalars(g, s1, s2, VD + 2)
    g.A(f'v_lshlrev_b32 v{VLN}, 16, v{VXR}\nv_and_b32 v{VLN+1}, s{SHI}, v{VXR}\nv_lshlrev_b32 v{VLN+2}, 16, v{VXR+1}\nv_and_b32 v{VLN+3}, s{SHI}, v{VXR+1}')
    for i in range(4): g.A(f'v_sub_f32 v{VLN+i}, v{VLN+i}, v{s1}')
    rb_list(g, [VLN + i for i in range(4)], [VD + 2, VD + 3])
    g.A(f'v_rcp_f32 v{VD+4}, v{s2}')
    for i in range(4):
        g.A(f'v_mul_f32 v{VD+5}, v{VLN+i}, v{VD+4}\nv_fma_f32 v{VD+6}, -v{VD+5}, v{s2}, v{VLN+i}\nv_fma_f32 v{VLN+i}, v{VD+6}, v{VD+4}, v{VD+5}')
    rb_list(g, [VLN + i for i in range(4)], [VD + 2, VD + 3])
    wo_loads = [(ih, il) for ih in range(2) for il in range(4)]
    no0 = cfg.get('A_no0', 0)
    for ih, il in wo_loads[:no0]: wload(g, 'wo', WO + 16 * ih + 4 * il, VAO, S_B, (16 * ih + il) * 2048, 0, winA)
    g.A(f's_lshl_b32 s{ST2}, s{SXC}, 13\ns_add_u32 s{ST2}, s{ST2}, {MODP:#x}\ns_add_u32 s{ST3}, s{ST2}, 0x10000')
    sa, ca = VD, VD + 4
    poll(g, [(sa, 4, VG16, ST2, 0), (ca, 4, VG16, ST3, 0)]); g.stamp(3)
    no1 = cfg.get('A_no1', 2)
    for ih, il in wo_loads[no0:no1]: wload(g, 'wo', WO + 16 * ih + 4 * il, VAO, S_B, (16 * ih + il) * 2048)
    no1 = max(no0, no1)
    dpp_reduce8(g, [VD + i for i in range(8)])
    tm = [VD + 8, VD + 9]
    rb_list(g, [VD + i for i in range(8)], tm)
    for i in range(4): g.A(f'v_add_f32 v{ca+i}, 1.0, v{ca+i}')
    rb_list(g, [ca + i for i in range(4)], tm)
    for i in range(4): g.A(f'v_mul_f32 v{ca+i}, v{ca+i}, v{VLN+i}')
    rb_list(g, [ca + i for i in range(4)], tm)
    for i in range(4): g.A(f'v_add_f32 v{ca+i}, v{ca+i}, v{sa+i}')
    for i in range(4): g.A(f'v_cvt_pk_bf16_f32 v{VX+i}, v{ca+i}, v{ca+i}')
    gemv(g, [VX + i for i in range(4)], [[WQ + 8 * i, WQ + 8 * i + 4] for i in range(4)], VACC)
    g.A(f's_lshl_b32 s{ST2}, s{SU}, 4\ns_add_u32 s{ST2}, s{ST2}, s{SXC}\ns_lshl_b32 s{ST2}, s{ST2}, 10\ns_add_u32 s{ST2}, s{ST2}, {QP:#x}')
    red_add(g, VACC, 1)
    barrier(g)
    publish(g, 1, 2, ST2, 8192); g.stamp(4)
    win2 = cfg.get('A_win2', 0)
    for ih, il in wo_loads[no1:]: wload(g, 'wo', WO + 16 * ih + 4 * il, VAO, S_B, (16 * ih + il) * 2048, 0, win2)
    for i in range(4): wload(g, 'p1b', W1B + 4 * i, VA1B, S_MOD, i * 12288, 0, win2)
    n20 = cfg.get('A_n20', 0)
    for ih, il in wo_loads[:n20]: wload(g, 'w2', W2 + 16 * ih + 4 * il, VA2, S_C, (16 * ih + il) * 2048, 0, win2)
    g.wait('p1b')
    p1_stage(g, W1B, 3, 16); g.stamp(5)
    VGO, VGM = 240, 241
    g.A(f's_lshr_b32 s{ST0}, s{SW}, 2\ns_lshl_b32 s{ST1}, s{SU}, 1\ns_add_u32 s{ST0}, s{ST0}, s{ST1}')
    g.A(f's_lshr_b32 s{ST1}, s{ST0}, 3\ns_and_b32 s{ST0}, s{ST0}, 7')
    g.A(f's_lshl_b32 s{ST2}, s{ST1}, 16\ns_lshl_b32 s{ST3}, s{ST0}, 6\ns_add_u32 s{ST2}, s{ST2}, s{ST3}\ns_and_b32 s{ST3}, s{SW}, 3\ns_lshl_b32 s{ST3}, s{ST3}, 10\ns_add_u32 s{ST2}, s{ST2}, s{ST3}\ns_add_u32 s{ST2}, s{ST2}, {OP:#x}')
    g.A(f'v_lshlrev_b32 v{VGO}, 18, v{VB}\nv_lshl_add_u32 v{VGO}, v{VJJ}, 12, v{VGO}\nv_lshl_add_u32 v{VGO}, v{VKQ}, 4, v{VGO}\nv_add_u32 v{VGO}, s{ST2}, v{VGO}')
    g.A(f's_lshl_b32 s{ST2}, s{ST1}, 11\ns_lshl_b32 s{ST3}, s{ST0}, 3\ns_add_u32 s{ST2}, s{ST2}, s{ST3}\ns_add_u32 s{ST2}, s{ST2}, {MLP:#x}')
    g.A(f'v_lshlrev_b32 v{VGM}, 13, v{VB}\nv_lshl_add_u32 v{VGM}, v{VJJ}, 7, v{VGM}\nv_add_u32 v{VGM}, s{ST2}, v{VGM}')
    g.A(f's_mov_b32 s{ST3}, 0x8000')
    O0, O1, ML = VD, VD + 8, VD + 16
    poll(g, [(ML, 2, VGM, None, 0), (ML + 2, 2, VGM, None, 1024), (O0, 4, VGO, None, 0), (O0 + 4, 4, VGO, None, 512),
             (O1, 4, VGO, ST3, 0), (O1 + 4, 4, VGO, ST3, 512)]); g.stamp(6)
    n21 = max(n20, cfg.get('A_n21', 2))
    for ih, il in wo_loads[n20:n21]: wload(g, 'w2', W2 + 16 * ih + 4 * il, VA2, S_C, (16 * ih + il) * 2048)
    M = VD + 20
    g.A(f'v_max_f32 v{M}, v{ML}, v{ML+2}')
    dpp_reduce8(g, [M], 'max')
    g.A(f'v_sub_f32 v{ML}, v{ML}, v{M}\nv_sub_f32 v{ML+2}, v{ML+2}, v{M}\nv_exp_f32 v{ML}, v{ML}\nv_exp_f32 v{ML+2}, v{ML+2}')
    g.A(f'v_mul_f32 v{M}, v{ML}, v{ML+1}\nv_fmac_f32 v{M}, v{ML+2}, v{ML+3}')
    for i in range(8): g.A(f'v_mul_f32 v{O0+i}, v{O0+i}, v{ML}')
    for i in range(8): g.A(f'v_fmac_f32 v{O0+i}, v{O1+i}, v{ML+2}')
    dpp_reduce8(g, [M] + [O0 + i for i in range(8)])
    g.A(f'v_rcp_f32 v{M}, v{M}')
    for i in range(8): g.A(f'v_mul_f32 v{O0+i}, v{O0+i}, v{M}')
    for i in range(8): g.A(f'v_cvt_pk_bf16_f32 v{VX+i}, v{O0+i}, v{O0+i}')
    gemv(g, [VX + i for i in range(8)], [[WO + 4 * i] for i in range(8)], [VACC[0]])
    g.A(f's_lshl_b32 s{ST2}, s{SXC}, 4\ns_add_u32 s{ST2}, s{ST2}, s{SU}\ns_lshl_b32 s{ST2}, s{ST2}, 10\ns_add_u32 s{ST2}, s{ST2}, {ATP:#x}')
    red_add(g, [VACC[0]], 4)
    barrier(g)
    publish(g, 4, 1, ST2, 0); g.stamp(7)
    for r in range(4): g.A(f'v_mov_b32 v{VACC[0]+r}, 0')
    g.A(f's_cmp_eq_u32 s{SW}, 7\ns_cbranch_scc1 L_A_p6skip')
    win3 = cfg.get('A_win3', 0)
    for ih, il in wo_loads[n21:]: wload(g, 'w2', W2 + 16 * ih + 4 * il, VA2, S_C, (16 * ih + il) * 2048, 0, win3)
    VGH, VGS = 240, 241
    g.A(f's_mul_i32 s{ST0}, s{SU}, 224\ns_lshl_b32 s{ST1}, s{SW}, 5\ns_add_u32 s{ST0}, s{ST0}, s{ST1}\ns_lshr_b32 s{ST1}, s{ST0}, 7\ns_and_b32 s{ST0}, s{ST0}, 127')
    g.A(f's_lshl_b32 s{ST2}, s{ST1}, 13\ns_lshl_b32 s{ST0}, s{ST0}, 2\ns_add_u32 s{ST2}, s{ST2}, s{ST0}\ns_add_u32 s{ST2}, s{ST2}, {HIDP:#x}')
    g.A(f'v_lshlrev_b32 v{VGH}, 10, v{VJJ}\nv_lshl_add_u32 v{VGH}, v{VB}, 9, v{VGH}\nv_lshl_add_u32 v{VGH}, v{VKQ}, 4, v{VGH}\nv_add_u32 v{VGH}, s{ST2}, v{VGH}')
    g.A(f's_lshr_b32 s{ST1}, s{ST1}, 1\ns_lshl_b32 s{ST1}, s{ST1}, 7\ns_add_u32 s{ST1}, s{ST1}, {STP:#x}')
    g.A(f'v_lshlrev_b32 v{VGS}, 11, v{VJJ}\nv_lshl_add_u32 v{VGS}, v{VB}, 3, v{VGS}\nv_add_u32 v{VGS}, s{ST1}, v{VGS}')
    g.A(f's_mov_b32 s{ST2}, {HTERM:#x}\ns_mov_b32 s{ST3}, {2*HTERM:#x}')
    BV, CV, AV, SS = VD + 8, VD + 16, VD, VD + 24
    poll(g, [(BV, 4, VGH, ST2, 0), (BV + 4, 4, VGH, ST2, 64), (CV, 4, VGH, ST3, 0), (CV + 4, 4, VGH, ST3, 64)]); g.stamp(8)
    dpp_reduce8(g, [BV + i for i in range(16)])
    poll(g, [(SS, 2, VGS, None, 0), (AV, 4, VGH, None, 0), (AV + 4, 4, VGH, None, 64)]); g.stamp(9)
    dpp_reduce8(g, [SS, SS + 1] + [AV + i for i in range(8)])
    ln_scalars(g, SS, SS + 1, SS + 2)
    g.A(f'v_rcp_f32 v{SS+1}, v{SS+1}')
    for i in range(8): g.A(f'v_fma_f32 v{AV+i}, -v{SS}, v{BV+i}, v{AV+i}')
    for i in range(8): g.A(f'v_fma_f32 v{AV+i}, v{AV+i}, v{SS+1}, v{CV+i}')
    for i in range(8): g.A(f'v_max_f32 v{AV+i}, 0, v{AV+i}')
    for i in range(8): g.A(f'v_cvt_pk_bf16_f32 v{VX+i}, v{AV+i}, v{AV+i}')
    gemv(g, [VX + i for i in range(8)], [[W2 + 4 * i] for i in range(8)], [VACC[0]])
    g.A('L_A_p6skip:')
    red_add(g, [VACC[0]], 5)
    g.A(f's_lshl_b32 s{ST2}, s{SXC}, 4\ns_add_u32 s{ST2}, s{ST2}, s{SU}\ns_lshl_b32 s{ST2}, s{ST2}, 10\ns_add_u32 s{ST2}, s{ST2}, {OUTP:#x}')
    barrier(g)
    publish(g, 5, 1, ST2, 0); g.stamp(10)
    finish(g, 11)

def prog_B(g):
    cfg = g.cfg
    KF, VFR, PF, W1B, W1 = 80, 112, 144, 176, 192
    VAK = [224, 225, 226, 227]; VAV = [228, 229]
    VA1B, VA5 = 230, 231
    VC, VXR = 232, 234
    VGA, VTD, VSB, VX2 = 236, 240, 244, 76
    srd(g, S_A, 66, 0x4000000)
    srd(g, S_B, 68, 0x4000000)
    g.A(f's_lshl_b32 s{ST2}, s{SXC}, 23\ns_lshl_b32 s{ST1}, s{SU}, 16\ns_add_u32 s{ST2}, s{ST2}, s{ST1}\ns_lshl_b32 s{ST1}, s{SW}, 13\ns_add_u32 s{ST2}, s{ST2}, s{ST1}\ns_add_u32 s{ST2}, s{ST2}, {28672*256:#x}')
    g.A(f's_add_u32 s{ST3}, s{ST2}, 4096')
    g.A(f'v_xor_b32 v{VT}, v{VN}, v{VKQ}\nv_lshlrev_b32 v{VT}, 4, v{VT}\nv_lshl_add_u32 v{VAK[0]}, v{VKQ}, 8, v{VT}')
    for i in range(1, 4): g.A(f'v_xor_b32 v{VAK[i]}, {64*i}, v{VAK[0]}')
    g.A(f'v_lshlrev_b32 v{VT}, 1, v{VKQ}\nv_xor_b32 v{VT}, v{VN}, v{VT}\nv_lshlrev_b32 v{VT}, 4, v{VT}\nv_lshl_add_u32 v{VAV[0]}, v{VKQ}, 8, v{VT}\nv_xor_b32 v{VAV[1]}, 128, v{VAV[0]}')
    winB = cfg.get('B_win', 0)
    def dma(name, i, srdn, lbase, va, win):
        g.window(win)
        if i % 4 == 0:
            g.A(f's_lshl_b32 s{ST0}, s{SW}, 13\ns_add_u32 m0, s{ST0}, {lbase + (i//4)*4096}')
        o = f' offset:{(i%4)*1024}' if i % 4 else ''
        g.A(f'buffer_load_dwordx4 v{va}, s[{srdn}:{srdn+3}], s{ST2 if i < 4 else ST3} offen{o} nt lds'); g.issued(name)
    nk0 = cfg.get('B_nk0', 4)
    for i in range(nk0): dma('k', i, S_A, L_K, VAK[i % 4], 0)
    g.A(f's_mov_b32 s100, s{ST2}\ns_mov_b32 s101, s{ST3}')
    small_loads(g, VC, VXR)
    code_prefetch(g)
    lane_consts(g)
    g.A(f's_mov_b32 s{ST2}, s100\ns_mov_b32 s{ST3}, s101')
    if nk0 % 4: g.A(f's_lshl_b32 s{ST0}, s{SW}, 13\ns_add_u32 m0, s{ST0}, {L_K + (nk0//4)*4096}')
    for i in range(nk0, 8): dma('k', i, S_A, L_K, VAK[i % 4], winB)
    for i in range(8): dma('v', i, S_B, L_V, VAV[i % 2], winB)
    srd(g, S_C, 76, 1024 * 3584 * 2)
    srd(g, S_OUT, 84, 4096)
    p1_addr(g, VA1B, 32)
    g.A(f's_lshl_b32 s{ST2}, s{SXC}, 7\ns_lshl_b32 s{ST1}, s{SW}, 4\ns_add_u32 s{ST2}, s{ST2}, s{ST1}\ns_min_u32 s{ST1}, s{SU}, 13\ns_lshl_b32 s{ST1}, s{ST1}, 9')
    tile_addr(g, VA5, ST2, 7168, ST1)
    g.wait('c')
    silu(g, VC)
    nb0 = cfg.get('B_nb0', 0)
    for i in range(nb0): wload(g, 'p1b', W1B + 4 * i, VA1B, S_MOD, i * 12288, 0, winB)
    g.wait('k'); g.stamp(1)
    a0 = VD
    g.A(f'v_xor_b32 v{VT}, v{VN}, v{VKQ}\nv_lshlrev_b32 v{VT}, 4, v{VT}\nv_lshl_add_u32 v{a0}, v{VN}, 8, v{VT}\ns_lshl_b32 s{ST0}, s{SW}, 13\nv_add_u32 v{a0}, s{ST0}, v{a0}')
    for i in range(1, 4): g.A(f'v_xor_b32 v{a0+i}, {64*i}, v{a0}')
    for t in range(2):
        for i in range(4):
            r = KF + 16 * t + 4 * i
            g.A(f'ds_read_b128 v[{r}:{r+3}], v{a0+i} offset:{L_K + t*4096}')
    VQG, VQW, VQR, VVR, VMX, VPW, VPR, VOS = 248, 249, 251, 252, 253, 254, 255, 247
    g.A(f's_and_b32 s{ST0}, s{SXC}, 3\ns_lshl_b32 s{ST0}, s{ST0}, 3\ns_add_u32 s{ST0}, s{ST0}, s{SW}\ns_lshl_b32 s{ST0}, s{ST0}, 13')
    g.A(f's_lshr_b32 s{ST1}, s{SXC}, 2\ns_lshl_b32 s{ST1}, s{ST1}, 9\ns_add_u32 s{ST0}, s{ST0}, s{ST1}\ns_add_u32 s{ST0}, s{ST0}, {QP:#x}')
    g.A(f'v_and_b32 v{VT}, 31, v{VL}\nv_lshrrev_b32 v{VQG}, 5, v{VL}\nv_lshlrev_b32 v{VQG}, 12, v{VQG}\nv_lshl_add_u32 v{VQG}, v{VT}, 4, v{VQG}\nv_add_u32 v{VQG}, s{ST0}, v{VQG}')
    g.A(f's_mul_i32 s{ST0}, s{SW}, 272\ns_add_u32 s{ST0}, s{ST0}, {L_Q}\nv_lshlrev_b32 v{VQW}, 3, v{VT}\nv_add_u32 v{VQW}, s{ST0}, v{VQW}')
    g.A(f'v_mul_u32_u24 v{VQR}, 272, v{VJJ}\nv_lshl_add_u32 v{VQR}, v{VKQ}, 4, v{VQR}\nv_add_u32 v{VQR}, {L_Q}, v{VQR}')
    g.A(f'v_lshrrev_b32 v{VT}, 2, v{VL}')
    g.A(f'v_and_b32 v{VD+4}, 7, v{VT}\nv_lshlrev_b32 v{VD+4}, 1, v{VD+4}\nv_bfe_u32 v{VD+5}, v{VL}, 1, 1\ns_lshl_b32 s{ST0}, s{SW}, 1\nv_add_u32 v{VD+5}, s{ST0}, v{VD+5}\nv_xor_b32 v{VD+4}, v{VD+4}, v{VD+5}')
    g.A(f'v_lshlrev_b32 v{VVR}, 8, v{VT}\nv_lshl_add_u32 v{VVR}, v{VD+4}, 4, v{VVR}\nv_and_b32 v{VD+5}, 1, v{VL}\nv_lshl_add_u32 v{VVR}, v{VD+5}, 3, v{VVR}\nv_add_u32 v{VVR}, {L_V}, v{VVR}')
    VMW = 246
    g.A(f'v_lshlrev_b32 v{VMX}, 5, v{VJJ}\nv_add_u32 v{VMX}, {L_MAX}, v{VMX}\ns_lshl_b32 s{ST0}, s{SW}, 2\nv_add_u32 v{VMW}, s{ST0}, v{VMX}')
    g.A(f'v_lshlrev_b32 v{VPR}, 4, v{VL}\nv_add_u32 v{VPR}, {L_PX}, v{VPR}\ns_lshl_b32 s{ST0}, s{SW}, 10\nv_add_u32 v{VPW}, s{ST0}, v{VPR}')
    g.A(f'v_lshlrev_b32 v{VOS}, 6, v{VN}\nv_lshl_add_u32 v{VOS}, v{VKQ}, 4, v{VOS}')
    poll(g, [(VD + 4 * t, 4, VQG, None, t * 1024) for t in range(4)]); g.stamp(2)
    nb1 = max(nb0, cfg.get('B_nb1', 2))
    for i in range(nb0, nb1): wload(g, 'p1b', W1B + 4 * i, VA1B, S_MOD, i * 12288)
    for i in range(4): g.A(f'v_add_f32 v{VD+i}, v{VD+i}, v{VD+4+i}\nv_add_f32 v{VD+8+i}, v{VD+8+i}, v{VD+12+i}')
    for i in range(4): g.A(f'v_add_f32 v{VD+i}, v{VD+i}, v{VD+8+i}')
    for i in range(4): g.A(f'v_mov_b32 v{VD+4+i}, v{VD+i}')
    for i in range(4): g.A(f'v_permlane32_swap_b32 v{VD+i}, v{VD+4+i}')
    for i in range(4): g.A(f'v_add_f32 v{VD+i}, v{VD+i}, v{VD+4+i}')
    g.A(f'v_cvt_pk_bf16_f32 v{VD}, v{VD}, v{VD+1}\nv_cvt_pk_bf16_f32 v{VD+1}, v{VD+2}, v{VD+3}')
    g.A(f'ds_write_b64 v{VQW}, v[{VD}:{VD+1}]')
    barrier(g)
    QF = VD
    for i in range(4): g.A(f'ds_read_b128 v[{QF+4*i}:{QF+4*i+3}], v{VQR} offset:{64*i}')
    nearly = 8
    trs = [(s, t) for s in range(8) for t in range(2)]
    for s, t in trs[:nearly]:
        r = VFR + 4 * s + 2 * t
        g.A(f'ds_read_b64_tr_b16 v[{r}:{r+1}], v{VVR} offset:{s*8192 + t*4096}')
    S = VD + 16
    for i in range(4):
        g.A(f's_waitcnt lgkmcnt({nearly + 3 - i})')
        for t in range(2):
            acc = S + 4 * t; k = KF + 16 * t + 4 * i
            cin = '0' if i == 0 else f'v[{acc}:{acc+3}]'
            g.A(f'v_mfma_f32_16x16x32_bf16 v[{acc}:{acc+3}], v[{k}:{k+3}], v[{QF+4*i}:{QF+4*i+3}], {cin}')
    g.A('s_waitcnt lgkmcnt(6)')
    for s, t in trs[nearly:]:
        r = VFR + 4 * s + 2 * t
        g.A(f'ds_read_b64_tr_b16 v[{r}:{r+1}], v{VVR} offset:{s*8192 + t*4096}')
    sr = [S + i for i in range(8)]
    tm = [VD + 24, VD + 25, VD + 26, VD + 27]
    rb_list(g, sr, tm)
    for r in sr: g.A(f'v_mul_f32 v{r}, {SCALE:#x}, v{r}')
    rb_list(g, sr, tm)
    m = VD + 28
    g.A(f'v_max3_f32 v{m}, v{S}, v{S+1}, v{S+2}\nv_max3_f32 v{m+1}, v{S+3}, v{S+4}, v{S+5}\nv_max3_f32 v{m}, v{m}, v{S+6}, v{S+7}\nv_max_f32 v{m}, v{m}, v{m+1}')
    allreduce_kq(g, [m], [m + 1], 'max')
    g.A(f'ds_write_b32 v{VMW}, v{m}')
    barrier(g)
    g.A(f'ds_read_b128 v[{VD}:{VD+3}], v{VMX}\nds_read_b128 v[{VD+4}:{VD+7}], v{VMX} offset:16\ns_mov_b32 s{ST0}, {LOG2E:#x}\ns_waitcnt lgkmcnt(0)')
    g.A(f'v_max3_f32 v{m}, v{VD}, v{VD+1}, v{VD+2}\nv_max3_f32 v{m+1}, v{VD+3}, v{VD+4}, v{VD+5}\nv_max3_f32 v{m}, v{m}, v{VD+6}, v{VD+7}\nv_max_f32 v{m}, v{m}, v{m+1}')
    g.A(f'v_mul_f32 v{m}, s{ST0}, v{m}\nv_and_or_b32 v{m}, v{m}, s{SMASK}, v{VTAG}')
    for r in sr: g.A(f'v_fma_f32 v{r}, v{r}, s{ST0}, -v{m}')
    for r in sr: g.A(f'v_exp_f32 v{r}, v{r}')
    for i in range(4): g.A(f'v_cvt_pk_bf16_f32 v{tm[i]}, v{S+2*i}, v{S+2*i+1}')
    g.A(f'ds_write_b128 v{VPW}, v[{tm[0]}:{tm[3]}]')
    g.A(f'v_add_f32 v{S}, v{S}, v{S+1}\nv_add_f32 v{S+2}, v{S+2}, v{S+3}\nv_add_f32 v{S+4}, v{S+4}, v{S+5}\nv_add_f32 v{S+6}, v{S+6}, v{S+7}')
    g.A(f'v_add_f32 v{S}, v{S}, v{S+2}\nv_add_f32 v{S+4}, v{S+4}, v{S+6}\nv_add_f32 v{S}, v{S}, v{S+4}')
    allreduce_kq(g, [S], [S + 1])
    g.A(f'ds_write_b32 v{VMW}, v{S} offset:256')
    barrier(g)
    for s in range(8): g.A(f'ds_read_b128 v[{PF+4*s}:{PF+4*s+3}], v{VPR} offset:{s*1024}')
    g.A(f'ds_read_b128 v[{VD}:{VD+3}], v{VMX} offset:256\nds_read_b128 v[{VD+4}:{VD+7}], v{VMX} offset:272')
    g.A(f's_lshl_b32 s{ST2}, s{SXC}, 4\ns_add_u32 s{ST2}, s{ST2}, s{SU}\ns_lshl_b32 s{ST3}, s{ST2}, 7\ns_add_u32 s{ST3}, s{ST3}, {MLP:#x}')
    g.A(f's_lshl_b32 s{ST2}, s{ST2}, 12\ns_lshl_b32 s{ST0}, s{SW}, 9\ns_add_u32 s{ST2}, s{ST2}, s{ST0}\ns_add_u32 s{ST2}, s{ST2}, {OP:#x}')
    acc = VACC[0]
    for s in range(8):
        g.A(f's_waitcnt lgkmcnt({9 - s})')
        cin = '0' if s == 0 else f'v[{acc}:{acc+3}]'
        g.A(f'v_mfma_f32_16x16x32_bf16 v[{acc}:{acc+3}], v[{VFR+4*s}:{VFR+4*s+3}], v[{PF+4*s}:{PF+4*s+3}], {cin}')
    g.A(f's_cmp_lg_u32 s{SW}, 7\ns_cbranch_scc1 L_B_noml')
    g.A('s_waitcnt lgkmcnt(0)')
    g.A(f'v_add_f32 v{VD}, v{VD}, v{VD+1}\nv_add_f32 v{VD+2}, v{VD+2}, v{VD+3}\nv_add_f32 v{VD+4}, v{VD+4}, v{VD+5}\nv_add_f32 v{VD+6}, v{VD+6}, v{VD+7}')
    g.A(f'v_add_f32 v{VD}, v{VD}, v{VD+2}\nv_add_f32 v{VD+4}, v{VD+4}, v{VD+6}\nv_add_f32 v{m+1}, v{VD}, v{VD+4}')
    g.A(f'v_and_or_b32 v{m+1}, v{m+1}, s{SMASK}, v{VTAG}\nv_lshlrev_b32 v{VT}, 3, v{VL}')
    g.A(f's_mov_b64 exec, 0xff\nbuffer_store_dwordx2 v[{m}:{m+1}], v{VT}, s[{S_WS}:{S_WS+3}], s{ST3} offen sc1\ns_mov_b64 exec, -1')
    g.A('L_B_noml:')
    g.A('s_nop 5')
    g.A(f'v_and_or_b32 v{acc}, v{acc}, s{SMASK}, v{VTAG}\nv_and_or_b32 v{acc+3}, v{acc+3}, s{SMASK}, v{VTAG}')
    g.A(f's_mov_b32 exec_lo, 0x00ff00ff\ns_mov_b32 exec_hi, 0x00ff00ff')
    g.A(f'buffer_store_dwordx4 v[{acc}:{acc+3}], v{VOS}, s[{S_WS}:{S_WS+3}], s{ST2} offen sc1'); g.issued('st')
    g.A('s_mov_b64 exec, -1'); g.stamp(3)
    win2 = cfg.get('B_win2', 0)
    for i in range(nb1, 4): wload(g, 'p1b', W1B + 4 * i, VA1B, S_MOD, i * 12288, 0, win2)
    w1_loads = [(i, c) for i in range(4) for c in range(2)]
    g.A(f's_cmp_ge_u32 s{SU}, 14\ns_cbranch_scc1 L_B_spare')
    vm_save = list(g.vm)
    n50 = cfg.get('B_n50', 4)
    for i, c in w1_loads[:n50]: wload(g, 'w1', W1 + 8 * i + 4 * c, VA5, S_C, i * 7168, c * 256, win2)
    g.wait('p1b')
    p1_stage(g, W1B, 0, 32); g.stamp(4)
    for i, c in w1_loads[n50:]: wload(g, 'w1', W1 + 8 * i + 4 * c, VA5, S_C, i * 7168, c * 256, win2)
    g.A(f's_lshl_b32 s{ST1}, s{SXC}, 13\ns_add_u32 s{ST1}, s{ST1}, {MODP + 16*8192:#x}\ns_add_u32 s{ST2}, s{ST1}, 0x10000\ns_add_u32 s{ST3}, s{ST1}, 0x20000')
    ga, sb, cb = VD, VD + 4, VD + 8
    poll(g, [(ga, 4, VG16, ST1, 0), (sb, 4, VG16, ST2, 0), (cb, 4, VG16, ST3, 0)]); g.stamp(5)
    dpp_reduce8(g, [VD + i for i in range(12)])
    tm = [VD + 12, VD + 13]
    rb_list(g, [ga + i for i in range(4)] + [cb + i for i in range(4)], tm)
    for i in range(4): g.A(f'v_mov_b32 v{VGA+i}, v{ga+i}\nv_add_f32 v{cb+i}, 1.0, v{cb+i}')
    for i in range(4): g.A(f'v_cvt_pk_bf16_f32 v{VTD+i}, v{cb+i}, v{cb+i}\nv_cvt_pk_bf16_f32 v{VX+i}, v{sb+i}, v{sb+i}')
    wr = [[W1 + 8 * i, W1 + 8 * i + 4] for i in range(4)]
    gemv(g, [VTD + i for i in range(4)], wr, VACC)
    A2 = [VD + 16, VD + 20]
    gemv(g, [VX + i for i in range(4)], wr, A2)
    red_add(g, VACC, 1)
    red_add(g, A2, 3)
    g.A(f's_lshl_b32 s{ST2}, s{SU}, 4\ns_add_u32 s{ST2}, s{ST2}, s{SXC}\ns_lshl_b32 s{ST2}, s{ST2}, 10\ns_add_u32 s100, s{ST2}, {HIDP:#x}')
    g.A(f's_add_u32 s{ST2}, s100, {HTERM:#x}\ns_add_u32 s{ST3}, s100, {2*HTERM:#x}')
    barrier(g)
    publish(g, 1, 2, ST2, 8192)
    publish(g, 3, 2, ST3, 8192); g.stamp(6)
    g.A(f'v_lshlrev_b32 v{VX2}, 16, v{VXR}\nv_and_b32 v{VX2+1}, s{SHI}, v{VXR}\nv_lshlrev_b32 v{VX2+2}, 16, v{VXR+1}\nv_and_b32 v{VX2+3}, s{SHI}, v{VXR+1}')
    for i in range(4): g.A(f'v_and_b32 v{VTD+i}, s{SHI}, v{VTD+i}')
    VST = 244
    g.A(f'v_lshlrev_b32 v{VST}, 6, v{VB}\nv_add_u32 v{VST}, {L_STAT}, v{VST}\nv_lshl_add_u32 v{VST+1}, v{VJJ}, 3, v{VST}\ns_lshl_b32 s{ST0}, s{SW}, 3\nv_add_u32 v{VST}, s{ST0}, v{VST}')
    g.A(f's_lshl_b32 s{ST2}, s{SXC}, 14\ns_add_u32 s{ST2}, s{ST2}, {ATP:#x}\ns_add_u32 s{ST3}, s{ST2}, 0x2000')
    poll(g, [(VD, 4, VG16, ST2, 0), (VD + 4, 4, VG16, ST3, 0)]); g.stamp(7)
    at = [VD + i for i in range(4)]
    for i in range(4): g.A(f'v_add_f32 v{VD+i}, v{VD+i}, v{VD+4+i}')
    dpp_reduce8(g, at)
    tm = [VD + 4, VD + 5]
    rb_list(g, at, tm)
    for i in range(4): g.A(f'v_mul_f32 v{VD+i}, v{VD+i}, v{VGA+i}')
    rb_list(g, at, tm)
    for i in range(4): g.A(f'v_add_f32 v{VX2+i}, v{VX2+i}, v{VD+i}')
    rb_list(g, [VX2 + i for i in range(4)], tm)
    for i in range(4): g.A(f'v_mul_f32 v{VD+i}, v{VX2+i}, v{VTD+i}')
    for i in range(4): g.A(f'v_cvt_pk_bf16_f32 v{VX+i}, v{VD+i}, v{VD+i}')
    gemv(g, [VX + i for i in range(4)], wr, VACC)
    g.A(f'v_add_f32 v{VD}, v{VX2}, v{VX2+1}\nv_add_f32 v{VD+2}, v{VX2+2}, v{VX2+3}\nv_mul_f32 v{VD+1}, v{VX2}, v{VX2}\nv_add_f32 v{VD}, v{VD}, v{VD+2}')
    for i in range(1, 4): g.A(f'v_fmac_f32 v{VD+1}, v{VX2+i}, v{VX2+i}')
    allreduce_kq(g, [VD, VD + 1], [VD + 2, VD + 3])
    g.A(f'ds_write_b64 v{VST}, v[{VD}:{VD+1}]')
    red_add(g, VACC, 5)
    g.A(f's_mov_b32 s{ST2}, s100')
    barrier(g)
    g.A(f'ds_read_b64 v[{VD+8}:{VD+9}], v{VST+1}')
    publish(g, 5, 2, ST2, 8192)
    g.A(f's_cmp_lg_u32 s{SW}, 2\ns_cbranch_scc1 L_B_nostat')
    g.A(f's_lshl_b32 s{ST2}, s{SXC}, 4\ns_add_u32 s{ST2}, s{ST2}, s{SU}\ns_lshl_b32 s{ST2}, s{ST2}, 7\ns_add_u32 s{ST2}, s{ST2}, {STP:#x}')
    dpp_reduce8(g, [VD + 8, VD + 9])
    g.A(f'v_and_or_b32 v{VD+8}, v{VD+8}, s{SMASK}, v{VTAG}\nv_and_or_b32 v{VD+9}, v{VD+9}, s{SMASK}, v{VTAG}')
    g.A(f's_mov_b64 exec, 0x101\nbuffer_store_dwordx2 v[{VD+8}:{VD+9}], v{VL}, s[{S_WS}:{S_WS+3}], s{ST2} offen sc1\ns_mov_b64 exec, -1')
    g.A('L_B_nostat:'); g.stamp(8)
    g.A(f's_cmp_lg_u32 s{SU}, 0\ns_cbranch_scc1 L_B_done')
    g.A(f's_lshl_b32 s{ST1}, s{SXC}, 13\ns_add_u32 s{ST1}, s{ST1}, {MODP + 40*8192:#x}')
    poll(g, [(VGA, 4, VG16, ST1, 0)])
    gb = [VGA + i for i in range(4)]
    dpp_reduce8(g, gb)
    rb_list(g, gb, [VD, VD + 1])
    g.A(f'v_lshlrev_b32 v{VST}, 11, v{VB}\nv_lshl_add_u32 v{VST}, v{VKQ}, 3, v{VST}')
    g.A(f's_lshl_b32 s{ST1}, s{SXC}, 8\ns_lshl_b32 s{ST0}, s{SW}, 5\ns_add_u32 s{ST1}, s{ST1}, s{ST0}')
    g.A(f's_lshl_b32 s{ST2}, s{SXC}, 14\ns_add_u32 s{ST2}, s{ST2}, {OUTP:#x}\ns_add_u32 s{ST3}, s{ST2}, 0x2000')
    poll(g, [(VD, 4, VG16, ST2, 0), (VD + 4, 4, VG16, ST3, 0)]); g.stamp(9)
    for i in range(4): g.A(f'v_add_f32 v{VD+i}, v{VD+i}, v{VD+4+i}')
    dpp_reduce8(g, at)
    rb_list(g, at, tm)
    for i in range(4): g.A(f'v_mul_f32 v{VD+i}, v{VD+i}, v{VGA+i}')
    rb_list(g, at, tm)
    for i in range(4): g.A(f'v_add_f32 v{VD+i}, v{VX2+i}, v{VD+i}')
    g.A(f'v_cvt_pk_bf16_f32 v{VD}, v{VD}, v{VD+1}\nv_cvt_pk_bf16_f32 v{VD+1}, v{VD+2}, v{VD+3}')
    g.A(f's_mov_b32 exec_lo, 0x01010101\ns_mov_b32 exec_hi, 0x01010101')
    g.A(f'buffer_store_dwordx2 v[{VD}:{VD+1}], v{VST}, s[{S_OUT}:{S_OUT+3}], s{ST1} offen')
    g.A('s_mov_b64 exec, -1')
    g.A(f's_or_b32 s{ST0}, s{SXC}, s{SW}\ns_cmp_lg_u32 s{ST0}, 0\ns_cbranch_scc1 L_B_done')
    g.A(f'v_mov_b32 v{VD+2}, s{STAG}\nv_mov_b32 v{VT}, 0\ns_mov_b64 exec, 1\nbuffer_store_dword v{VD+2}, v{VT}, s[{S_WS}:{S_WS+3}], 0 offen sc1\ns_mov_b64 exec, -1')
    g.A('L_B_done:'); g.stamp(10)
    finish(g, 11)
    g.A('L_B_spare:')
    g.vm = vm_save
    g.wait('p1b')
    p1_stage(g, W1B, 0, 32); g.stamp(4)
    finish(g, 11)

HEAD = open('adaLN_cond__sliding_block_cached__dense_activation_relu__decode.s.ref').read().split('; Override launch')[0]

def generate(cfg):
    g = G(cfg)
    prologue(g)
    g.A('s_cmp_ge_u32 s2, 128\ns_cbranch_scc1 L_progB')
    prog_A(g)
    g.A('L_progB:')
    g.vm = []
    prog_B(g)
    g.A('L_exit:\ns_endpgm')
    body = pad_hazards(g.L)
    out = [HEAD.rstrip(), f'; @launch grid=(256,1,1) block=(512,1,1) lds={LDS_BYTES}',
           '.amdgcn_target "amdgcn-amd-amdhsa--gfx950"', '.text', f'.globl {KNAME}', '.p2align 8', f'.type {KNAME},@function', f'{KNAME}:']
    out += [(l if l.endswith(':') else '    ' + l) for l in body]
    out += ['.p2align 8', '.fill 64, 4, 0xbf800000' if False else '']
    out += ['.section .rodata,"a"', '.p2align 6', f'.amdhsa_kernel {KNAME}', '  .amdhsa_next_free_vgpr 256', '  .amdhsa_next_free_sgpr 102',
            '  .amdhsa_accum_offset 256', '  .amdhsa_group_segment_fixed_size 0', '  .amdhsa_kernarg_size 104', '  .amdhsa_user_sgpr_count 2',
            '  .amdhsa_user_sgpr_kernarg_segment_ptr 1', '  .amdhsa_system_sgpr_workgroup_id_x 1', '  .amdhsa_float_denorm_mode_32 3', '.end_amdhsa_kernel', '']
    return '\n'.join(out)

if __name__ == '__main__':
    cfg = {}
    for a in sys.argv[2:]:
        k, v = a.split('='); cfg[k] = int(v)
    open(sys.argv[1], 'w').write(generate(cfg))
```

```python
import sys
from asmlib import pad_hazards

KNAME = 'adaLN_cond__sliding_block_cached__dense_activation_relu__decode_kernel'

MODP = 0x1000
QP   = 0x80000
OP   = 0x100000
MLP  = 0x180000
ATP  = 0x1A0000
HIDP = 0x200000
HTERM = 28 * 8 * 1024
STP  = 0x2C0000
OUTP = 0x300000
PROF = 0x400000
WS_BYTES = 0x800000

RSTR = 1088; RBUF = 8 * RSTR
L_K = 0; L_V = 65536; L_RED = 131072; L_Q = L_RED + RBUF; L_PX = L_Q + 2304; L_MAX = L_PX + 8192
L_SUM = L_MAX + 256; L_STAT = L_SUM + 256; L_END = L_STAT + 128
LDS_BYTES = (L_END + 255) // 256 * 256

LOG2E = 0x3fb8aa3b
NLOG2E = 0xbfb8aa3b
SCALE = 0x3db504f3
SPIN_MAX = 30000
DPPF = 'row_mask:0xf bank_mask:0xf'

class G:
    def __init__(self, cfg):
        self.L = []; self.cfg = cfg; self.vm = []; self.nlab = 0
    def A(self, s):
        for line in s.split('\n'):
            line = line.strip()
            if line: self.L.append(line)
    def lab(self, p):
        self.nlab += 1; return f'L_{p}_{self.nlab}'
    def issued(self, name): self.vm.append(name)
    def wait(self, name):
        idx = [i for i, n in enumerate(self.vm) if n == name]
        if not idx: return
        n = len(self.vm) - 1 - idx[-1]
        self.A(f's_waitcnt vmcnt({n})'); self.vm = self.vm[idx[-1] + 1:]
    def window(self, win):
        if win and len(self.vm) >= win:
            self.A(f's_waitcnt vmcnt({win-1})'); self.vm = self.vm[len(self.vm) - (win - 1):] if win > 1 else []
    def stamp(self, k):
        if self.cfg.get('prof'):
            self.A(f's_memrealtime s[{SST+2*k}:{SST+1+2*k}]')
            self.A('s_waitcnt lgkmcnt(0)')

VL, VKQ, VN, VB, VE = 1, 2, 3, 4, 5
VM = [6, 7, 8, 9]
VTAG, VG16, VRA, VRR, VPUB, VT = 10, 11, 12, 13, 14, 15
VF = [16, 20]
VACC = [24, 28]
VD = 32
VS = 64
VX = 66
VRQ = 68
S_WS, S_MOD, S_K, S_V, S_WQ, S_WO, S_W1, S_W2, S_X, S_CC, S_OUT = 4, 8, 12, 16, 20, 24, 28, 32, 36, 40, 44
SW, SXC, SU, STAG = 84, 85, 86, 87
SK0, SK1 = 88, 89
SST = 48
NST = 14
ST0, ST1, ST2, ST3 = 90, 91, 92, 93
SMASK, SHI, SCNT, SPOLL, SEX = 94, 95, 96, 97, 98

def srd(g, d, ptr, size):
    g.A(f's_mov_b32 s{d}, s{ptr}\ns_mov_b32 s{d+1}, s{ptr+1}\ns_mov_b32 s{d+2}, {size:#x}\ns_mov_b32 s{d+3}, 0x20000')

def wload(g, name, dst, vaddr, srdn, soff, imm=0, win=0):
    g.window(win)
    so = '0'
    if soff:
        g.A(f's_mov_b32 s{ST0}, {soff:#x}'); so = f's{ST0}'
    o = f' offset:{imm}' if imm else ''
    g.A(f'buffer_load_dwordx4 v[{dst}:{dst+3}], v{vaddr}, s[{srdn}:{srdn+3}], {so} offen{o} nt')
    g.issued(name)

def rb(g, a):
    g.A(f'v_cvt_pk_bf16_f32 v{a}, v{a}, v{a}\nv_and_b32 v{a}, s{SHI}, v{a}')
def rb_pair(g, a, b, t):
    g.A(f'v_cvt_pk_bf16_f32 v{t}, v{a}, v{b}\nv_lshlrev_b32 v{a}, 16, v{t}\nv_and_b32 v{b}, s{SHI}, v{t}')
def rb_list(g, regs, temps):
    for k in range(0, len(regs), 2): rb_pair(g, regs[k], regs[k+1], temps[(k // 2) % len(temps)])

def rscatter(g, quads):
    for X in quads: g.A(f'v_permlane32_swap_b32 v{X}, v{X+2}\nv_permlane32_swap_b32 v{X+1}, v{X+3}')
    for X in quads: g.A(f'v_add_f32 v{X}, v{X}, v{X+2}\nv_add_f32 v{X+1}, v{X+1}, v{X+3}')
    for X in quads: g.A(f'v_permlane16_swap_b32 v{X}, v{X+1}')
    for X in quads: g.A(f'v_add_f32 v{X}, v{X}, v{X+1}')
    for X in quads: g.A(f'v_add_f32_dpp v{X}, v{X}, v{X} row_ror:8 {DPPF}')

def allreduce_kq(g, regs, temps, op='add'):
    for sw in ['v_permlane16_swap_b32', 'v_permlane32_swap_b32']:
        for r, t in zip(regs, temps): g.A(f'v_mov_b32 v{t}, v{r}')
        for r, t in zip(regs, temps): g.A(f'{sw} v{r}, v{t}')
        for r, t in zip(regs, temps): g.A(f'v_{op}_f32 v{r}, v{r}, v{t}')

def gemv(g, xdup, wregs, accs):
    n = 4 * len(xdup)
    def build(i):
        f = VF[i & 1]; s = i & 3
        for r in range(4): g.A(f'v_and_b32_dpp v{f+r}, v{xdup[i >> 2]}, v{VM[r]} quad_perm:[{s},{s},{s},{s}] {DPPF}')
    build(0)
    for i in range(n):
        if i + 1 < n: build(i + 1)
        f = VF[i & 1]
        for c, acc in enumerate(accs):
            cin = '0' if i == 0 else f'v[{acc}:{acc+3}]'
            w = wregs[i][c]
            g.A(f'v_mfma_f32_16x16x32_bf16 v[{acc}:{acc+3}], v[{f}:{f+3}], v[{w}:{w+3}], {cin}')

def slot_off(slot): return (slot - 1) * RBUF

def red_write(g, accs, slot, va=VRA):
    for c, acc in enumerate(accs):
        if slot == 0: g.A(f'v_add_u32 v{VT}, {L_RED}, v{va}\nds_write_b128 v{VT}, v[{acc}:{acc+3}]')
        else: g.A(f'ds_write_b128 v{va}, v[{acc}:{acc+3}] offset:{slot_off(slot + c)}')

def publish(g, slot, nacc, sbase, stride):
    skip = g.lab('pub')
    if nacc == 1: g.A(f's_cmp_ge_u32 s{SW}, 4\ns_cbranch_scc1 {skip}')
    d = VD
    if slot == 0:
        g.A(f'v_add_u32 v{VT}, {L_RED}, v{VRR}'); a = VT; o = 0
    else:
        a = VRR; o = slot_off(slot)
    g.A(f'ds_read_b128 v[{d}:{d+3}], v{a} offset:{o}')
    g.A(f'ds_read_b128 v[{d+4}:{d+7}], v{a} offset:{o + 4*RSTR}')
    if nacc > 1:
        g.A(f's_lshr_b32 s{ST0}, s{SW}, 2\ns_mul_i32 s{ST0}, s{ST0}, {stride}\ns_add_u32 s{sbase}, s{sbase}, s{ST0}')
    g.A('s_waitcnt lgkmcnt(0)')
    for i in range(4): g.A(f'v_add_f32 v{d+i}, v{d+i}, v{d+4+i}')
    for mode in ['quad_perm:[1,0,3,2]', 'quad_perm:[2,3,0,1]']:
        for i in range(4): g.A(f'v_add_f32_dpp v{d+i}, v{d+i}, v{d+i} {mode} {DPPF}')
    g.A(f'v_and_or_b32 v{d}, v{d}, s{SMASK}, v{VTAG}\nv_and_or_b32 v{d+3}, v{d+3}, s{SMASK}, v{VTAG}')
    g.A(f's_mov_b32 exec_lo, 0x11111111\ns_mov_b32 exec_hi, 0x11111111')
    g.A(f'buffer_store_dwordx4 v[{d}:{d+3}], v{VPUB}, s[{S_WS}:{S_WS+3}], s{sbase} offen sc1')
    g.A('s_mov_b64 exec, -1\ns_nop 0')
    g.A(f'{skip}:')

def gloads(g, loads):
    for dst, n, va, so, imm in loads:
        sfx = {4: 'x4', 2: 'x2'}[n]
        o = f' offset:{imm}' if imm else ''
        g.A(f'buffer_load_dword{sfx} v[{dst}:{dst+n-1}], v{va}, s[{S_WS}:{S_WS+3}], {"s%d" % so if so is not None else "0"} offen{o} sc1')

def poll(g, loads, sleep=None):
    top = g.lab('poll'); done = g.lab('ok')
    if sleep is None: sleep = g.cfg.get('sleep', 1)
    g.A(f's_mov_b32 s{SCNT}, 0')
    g.A(f'{top}:')
    gloads(g, loads)
    g.A(f's_add_u32 s{SCNT}, s{SCNT}, 1')
    first = True
    for k, (dst, n, va, so, imm) in enumerate(loads):
        g.A(f's_waitcnt vmcnt({len(loads)-1-k})')
        for r in (dst, dst + n - 1):
            if first: g.A(f'v_xor_b32 v{VT}, v{r}, v{VTAG}'); first = False
            else: g.A(f'v_bitop3_b32 v{VT}, v{VT}, v{r}, v{VTAG} bitop3:0xf6')
    g.A(f'v_and_b32 v{VT}, 0xff, v{VT}\nv_cmp_ne_u32 vcc, 0, v{VT}')
    g.A(f's_cbranch_vccz {done}')
    if sleep: g.A(f's_sleep {sleep}')
    g.A(f's_cmp_lt_u32 s{SCNT}, {SPIN_MAX}\ns_cbranch_scc1 {top}')
    g.A(f'{done}:')
    if g.cfg.get('prof'): g.A(f's_lshl_b32 s{SPOLL}, s{SPOLL}, 6\ns_min_u32 s{SCNT}, s{SCNT}, 63\ns_or_b32 s{SPOLL}, s{SPOLL}, s{SCNT}')
    g.vm = []

def barrier(g): g.A('s_waitcnt lgkmcnt(0)\ns_barrier')

def silu(g, src):
    t = VD
    g.A(f'v_lshlrev_b32 v{t}, 16, v{src}\nv_mul_f32 v{t+1}, {NLOG2E:#x}, v{t}\nv_exp_f32 v{t+1}, v{t+1}\nv_add_f32 v{t+1}, 1.0, v{t+1}')
    g.A(f'v_rcp_f32 v{t+2}, v{t+1}\nv_mul_f32 v{t+3}, v{t}, v{t+2}')
    g.A(f'v_cvt_pk_bf16_f32 v{VS}, v{t+3}, v{t+3}')

def ln_scalars(g, s1, s2, t):
    g.A(f'v_mul_f32 v{s1}, 0x3a800000, v{s1}\nv_mul_f32 v{s2}, 0x3a800000, v{s2}')
    g.A(f'v_fma_f32 v{s2}, -v{s1}, v{s1}, v{s2}\nv_max_f32 v{s2}, 0, v{s2}')
    rb_pair(g, s1, s2, t)
    g.A(f'v_add_f32 v{s2}, 0x3727c5ac, v{s2}')
    rb(g, s2)
    g.A(f'v_sqrt_f32 v{s2}, v{s2}')
    rb(g, s2)

def pair_reduce_s3(g, X, T):
    g.A(f'v_permlane32_swap_b32 v{X}, v{X+1}\nv_add_f32 v{X}, v{X}, v{X+1}\nv_mov_b32 v{T}, v{X}\nv_permlane16_swap_b32 v{X}, v{T}\nv_add_f32 v{X}, v{X}, v{T}')
    g.A(f'v_add_f32_dpp v{X}, v{X}, v{X} row_ror:8 {DPPF}')

def tile_addr(g, va, srow, stride, scol):
    g.A(f's_mul_i32 s{srow}, s{srow}, {stride}\ns_add_u32 s{srow}, s{srow}, s{scol}')
    g.A(f'v_mul_u32_u24 v{va}, {stride}, v{VKQ}\nv_lshl_add_u32 v{va}, v{VN}, 4, v{va}\nv_add_u32 v{va}, s{srow}, v{va}')

def p1_addr(g, va, cg_base):
    g.A(f's_and_b32 s{ST2}, s{SU}, 7\ns_lshl_b32 s{ST2}, s{ST2}, 7\ns_lshl_b32 s{ST1}, s{SW}, 4\ns_add_u32 s{ST2}, s{ST2}, s{ST1}')
    g.A(f's_and_b32 s{ST1}, s{SU}, 8\ns_add_u32 s{ST1}, s{ST1}, s{SXC}\ns_add_u32 s{ST1}, s{ST1}, {cg_base}\ns_lshl_b32 s{ST1}, s{ST1}, 8')
    tile_addr(g, va, ST2, 12288, ST1)

def p1_pub_base(g, s, cg_base):
    g.A(f's_and_b32 s{s}, s{SU}, 8\ns_add_u32 s{s}, s{s}, s{SXC}\ns_add_u32 s{s}, s{s}, {cg_base}\ns_lshl_b32 s{s}, s{s}, 3')
    g.A(f's_and_b32 s{ST0}, s{SU}, 7\ns_add_u32 s{s}, s{s}, s{ST0}\ns_lshl_b32 s{s}, s{s}, 10\ns_add_u32 s{s}, s{s}, {MODP:#x}')

def p1_stage(g, wreg, slot, cg_base):
    gemv(g, [VS], [[wreg + 4 * i] for i in range(4)], [VACC[0]])
    p1_pub_base(g, ST2, cg_base)
    red_write(g, [VACC[0]], slot)
    barrier(g)
    publish(g, slot, 1, ST2, 0)

def finish(g):
    if g.cfg.get('prof'):
        g.A(f's_lshl_b32 s{ST0}, s2, 3\ns_add_u32 s{ST0}, s{ST0}, s{SW}\ns_lshl_b32 s{ST0}, s{ST0}, 6\ns_add_u32 s{ST0}, s{ST0}, {PROF:#x}')
        g.A(f's_getreg_b32 s{ST1}, hwreg(HW_REG_XCC_ID)')
        g.A(f'v_mov_b32 v{VT}, 0\ns_mov_b64 exec, 1')
        for k in range(NST):
            g.A(f'v_mov_b32 v{VD}, s{SST+2*k}\nbuffer_store_dword v{VD}, v{VT}, s[{S_WS}:{S_WS+3}], s{ST0} offen offset:{4*k}')
        g.A(f'v_mov_b32 v{VD}, s{SPOLL}\nbuffer_store_dword v{VD}, v{VT}, s[{S_WS}:{S_WS+3}], s{ST0} offen offset:56')
        g.A(f'v_mov_b32 v{VD}, s{ST1}\nbuffer_store_dword v{VD}, v{VT}, s[{S_WS}:{S_WS+3}], s{ST0} offen offset:60')
    g.A('s_endpgm')

def srdc(g, d, size):
    g.A(f's_mov_b32 s{d+2}, {size:#x}\ns_mov_b32 s{d+3}, 0x20000')

def prologue(g):
    cfg = g.cfg
    if cfg.get('prof'): g.A(f's_memrealtime s[{SST}:{SST+1}]')
    g.A(f's_load_dwordx2 s[{S_MOD}:{S_MOD+1}], s[0:1], 72\ns_load_dwordx2 s[{S_K}:{S_K+1}], s[0:1], 8\ns_load_dwordx2 s[{S_CC}:{S_CC+1}], s[0:1], 64')
    g.A(f's_load_dwordx2 s[{S_WS}:{S_WS+1}], s[0:1], 96\ns_load_dwordx2 s[{S_V}:{S_V+1}], s[0:1], 16\ns_load_dwordx2 s[{S_WQ}:{S_WQ+1}], s[0:1], 24\ns_load_dwordx2 s[{S_X}:{S_X+1}], s[0:1], 0')
    g.A('s_cmp_ge_u32 s2, 256\ns_cbranch_scc1 L_exit')
    if cfg.get('code_pf', 1):
        g.A(f's_getpc_b64 s[{SEX}:{SEX+1}]')
        g.A('L_pc:')
        g.A(f'v_min_u32 v{VT}, (L_exit-L_pc)/64, v0\nv_lshlrev_b32 v{VT}, 6, v{VT}')
        g.A(f'global_load_dword v250, v{VT}, s[{SEX}:{SEX+1}]'); g.issued('code')
    g.A(f'v_lshrrev_b32 v{VT}, 6, v0\nv_and_b32 v{VL}, 63, v0')
    g.A(f'v_readfirstlane_b32 s{SW}, v{VT}')
    g.A(f'v_lshrrev_b32 v{VKQ}, 4, v{VL}\nv_and_b32 v{VN}, 15, v{VL}')
    g.A(f's_and_b32 s{SXC}, s2, 7\ns_bfe_u32 s{SU}, s2, 0x40003')

def late_consts(g):
    cfg = g.cfg
    g.A(f's_load_dword s{STAG}, s[{S_WS}:{S_WS+1}], 0')
    g.A(f's_load_dwordx2 s[{S_WO}:{S_WO+1}], s[0:1], 32\ns_load_dwordx2 s[{S_W1}:{S_W1+1}], s[0:1], 48\ns_load_dwordx2 s[{S_W2}:{S_W2+1}], s[0:1], 56\ns_load_dwordx2 s[{S_OUT}:{S_OUT+1}], s[0:1], 80')
    g.A(f's_mov_b32 s{SMASK}, 0xffffff00\ns_mov_b32 s{SHI}, 0xffff0000\ns_mov_b32 s{SPOLL}, 0')
    srdc(g, S_WS, WS_BYTES); srdc(g, S_X, 4096); srdc(g, S_CC, 4096); srdc(g, S_MOD, 1024 * 6144 * 2)
    srdc(g, S_WO, 4096 * 1024 * 2); srdc(g, S_W1, 1024 * 3584 * 2); srdc(g, S_W2, 3584 * 1024 * 2); srdc(g, S_OUT, 4096)

def ve_const(g):
    g.A(f'v_bfe_u32 v{VB}, v{VL}, 2, 1\nv_and_b32 v{VE}, 3, v{VL}\nv_lshl_add_u32 v{VE}, v{VE}, 2, v{VKQ}\nv_lshl_add_u32 v{VE}, v{VB}, 10, v{VE}\nv_lshlrev_b32 v{VE}, 1, v{VE}')

def zero_stamps(g):
    if g.cfg.get('prof'):
        for k in range(1, NST): g.A(f's_mov_b64 s[{SST+2*k}:{SST+1+2*k}], 0')

def lane_consts(g):
    g.A(f'v_and_b32 v{VT}, 1, v{VL}\nv_lshlrev_b32 v{VT}, 4, v{VT}\nv_mov_b32 v{VD}, 0xffff\nv_lshlrev_b32 v{VT}, v{VT}, v{VD}')
    g.A(f'v_bfe_u32 v{VD}, v{VL}, 1, 1\nv_bfe_u32 v{VD+1}, v{VL}, 3, 1\nv_lshl_add_u32 v{VD}, v{VD+1}, 1, v{VD}')
    for r in range(4):
        g.A(f'v_cmp_eq_u32 vcc, {r}, v{VD}\nv_cndmask_b32 v{VM[r]}, 0, v{VT}, vcc')
    g.A(f'v_lshrrev_b32 v{VG16}, 3, v{VL}\nv_lshlrev_b32 v{VG16}, 10, v{VG16}\nv_and_b32 v{VT}, 7, v{VL}\nv_lshl_add_u32 v{VG16}, v{VT}, 4, v{VG16}')
    g.A(f's_lshl_b32 s{ST0}, s{SW}, 7\nv_add_u32 v{VG16}, s{ST0}, v{VG16}')
    g.A(f'v_lshrrev_b32 v{VD}, 1, v{VKQ}\nv_and_b32 v{VD+1}, 1, v{VKQ}\ns_mul_i32 s{ST0}, s{SW}, {RSTR}')
    g.A(f'v_lshrrev_b32 v{VRA}, 1, v{VN}\nv_lshl_add_u32 v{VRA}, v{VRA}, 3, v{VD}\nv_lshl_add_u32 v{VRA}, v{VD+1}, 2, v{VRA}\nv_and_b32 v{VT}, 1, v{VN}\nv_lshl_add_u32 v{VRA}, v{VT}, 1, v{VRA}')
    g.A(f'v_lshl_add_u32 v{VRA}, v{VRA}, 4, s{ST0}')
    g.A(f'v_lshl_add_u32 v{VRQ}, v{VN}, 1, v{VD}\nv_lshl_add_u32 v{VRQ}, v{VD+1}, 5, v{VRQ}\nv_lshl_add_u32 v{VRQ}, v{VRQ}, 4, s{ST0}')
    g.A(f'v_lshrrev_b32 v{VPUB}, 2, v{VL}\nv_lshlrev_b32 v{VPUB}, 4, v{VPUB}\ns_and_b32 s{ST0}, s{SW}, 3\ns_lshl_b32 s{ST0}, s{ST0}, 8\nv_add_u32 v{VPUB}, s{ST0}, v{VPUB}')
    g.A(f'v_and_b32 v{VT}, 3, v{VL}\nv_mul_u32_u24 v{VT}, {RSTR}, v{VT}\ns_lshr_b32 s{ST0}, s{SW}, 2\ns_mul_i32 s{ST0}, s{ST0}, {RBUF}\nv_add3_u32 v{VRR}, v{VT}, v{VPUB}, s{ST0}')
    g.A('s_waitcnt lgkmcnt(0)')
    g.A(f's_add_u32 s{STAG}, s{STAG}, 1\ns_and_b32 s{ST0}, s{STAG}, 0xff\nv_mov_b32 v{VTAG}, s{ST0}')

def load_c(g, vc):
    g.A(f's_lshl_b32 s{ST1}, s{SW}, 5\ns_and_b32 s{ST0}, s{SU}, 7\ns_lshl_b32 s{ST0}, s{ST0}, 8\ns_add_u32 s{ST0}, s{ST0}, s{ST1}')
    g.A(f'buffer_load_ushort v{vc}, v{VE}, s[{S_CC}:{S_CC+3}], s{ST0} offen'); g.issued('c')
def load_xr(g, vxr):
    g.A(f's_lshl_b32 s{ST1}, s{SW}, 5\ns_lshl_b32 s{ST0}, s{SXC}, 8\ns_add_u32 s{ST0}, s{ST0}, s{ST1}')
    g.A(f'buffer_load_ushort v{vxr}, v{VE}, s[{S_X}:{S_X+3}], s{ST0} offen'); g.issued('xr')

def prog_A(g, head):
    cfg = g.cfg
    W1A, WQ, WO, W1B, W2 = 80, 96, 128, 160, 176
    VA1, VAQ, VAO, VA1B, VA2 = 210, 211, 212, 213, 214
    VC, VXR, VXF, VLN = 216, 217, 218, 220
    VGO, VGM, VGH, VGS = 222, 223, 224, 225
    if head:
        p1_addr(g, VA1, 0)
        srdc(g, S_MOD, 1024 * 6144 * 2); srdc(g, S_CC, 4096)
        ve_const(g)
        g.A('s_waitcnt lgkmcnt(0)')
        load_c(g, VC)
        for i in range(4): wload(g, 'p1a', W1A + 4 * i, VA1, S_MOD, 4 * i * 12288)
        g.A('s_branch L_progA')
        return
    zero_stamps(g); g.stamp(12)
    late_consts(g)
    srdc(g, S_WQ, 1024 * 4096 * 2)
    load_xr(g, VXR)
    g.A(f'v_lshrrev_b32 v{VT}, 5, v{VL}\nv_lshlrev_b32 v{VT}, 11, v{VT}\nv_and_b32 v{VD}, 31, v{VL}\nv_lshl_add_u32 v{VT}, v{VD}, 3, v{VT}\ns_lshl_b32 s{ST0}, s{SW}, 8')
    g.A(f'buffer_load_dwordx2 v[{VXF}:{VXF+1}], v{VT}, s[{S_X}:{S_X+3}], s{ST0} offen'); g.issued('xf')
    g.A(f's_lshl_b32 s{ST2}, s{SXC}, 7\ns_lshl_b32 s{ST1}, s{SW}, 4\ns_add_u32 s{ST2}, s{ST2}, s{ST1}\ns_lshl_b32 s{ST1}, s{SU}, 9')
    tile_addr(g, VAQ, ST2, 8192, ST1)
    lane_consts(g)
    g.wait('c')
    silu(g, VC)
    g.stamp(13)
    wq_l = [lambda win, i=i, c=c: wload(g, 'wq', WQ + 8 * i + 4 * c, VAQ, S_WQ, 4 * i * 8192, c * 256, win) for i in range(4) for c in range(2)]
    wo_l = [lambda win, ih=ih, s=s: wload(g, 'wo', WO + 16 * ih + 4 * s, VAO, S_WO, (128 * s + 4 * ih) * 2048, 0, win) for ih in range(2) for s in range(4)]
    p1b_l = [lambda win, i=i: wload(g, 'p1b', W1B + 4 * i, VA1B, S_MOD, 4 * i * 12288, 0, win) for i in range(4)]
    w2_l = [lambda win, i=i: wload(g, 'w2', W2 + 4 * i, VA2, S_W2, 4 * i * 2048, 0, win) for i in range(8)]
    seq = wq_l + (p1b_l + wo_l if cfg.get('A_p1b_first', 0) else wo_l + p1b_l) + w2_l
    pos = [0]
    def emit(upto, win):
        while pos[0] < upto: seq[pos[0]](win); pos[0] += 1
    emit(cfg.get('A_e0', 4), cfg.get('A_w0', 6))
    g.wait('xf'); g.stamp(1)
    gemv(g, [VS], [[W1A + 4 * i] for i in range(4)], [VACC[0]])
    s1, s2 = VD, VD + 1
    g.A(f's_mov_b32 s{ST0}, 0x3f803f80\nv_dot2_f32_bf16 v{s1}, v{VXF}, s{ST0}, 0\nv_dot2_f32_bf16 v{s2}, v{VXF}, v{VXF}, 0')
    g.A(f'v_dot2_f32_bf16 v{s1}, v{VXF+1}, s{ST0}, v{s1}\nv_dot2_f32_bf16 v{s2}, v{VXF+1}, v{VXF+1}, v{s2}')
    p1_pub_base(g, ST2, 0)
    red_write(g, [VACC[0]], 0)
    for mode in ['quad_perm:[1,0,3,2]', 'quad_perm:[2,3,0,1]', 'row_half_mirror', 'row_mirror']:
        for r in (s1, s2): g.A(f'v_add_f32_dpp v{r}, v{r}, v{r} {mode} {DPPF}')
    g.A(f's_lshl_b32 s{ST0}, s{SW}, 5\ns_add_u32 s{ST0}, s{ST0}, {L_Q}\nv_lshl_add_u32 v{VT}, v{VKQ}, 3, s{ST0}\nds_write_b64 v{VT}, v[{s1}:{s2}]')
    barrier(g)
    publish(g, 0, 1, ST2, 0); g.stamp(2)
    emit(8, cfg.get('A_w1', 4))
    g.A(f's_lshr_b32 s{ST2}, s{SU}, 2\ns_lshl_b32 s{ST2}, s{ST2}, 10\ns_and_b32 s{ST1}, s{SW}, 1\ns_lshl_b32 s{ST1}, s{ST1}, 9\ns_add_u32 s{ST2}, s{ST2}, s{ST1}')
    g.A(f's_and_b32 s{ST1}, s{SU}, 3\ns_lshl_b32 s{ST1}, s{ST1}, 5\ns_add_u32 s{ST2}, s{ST2}, s{ST1}\ns_lshr_b32 s{ST1}, s{SW}, 1\ns_lshl_b32 s{ST1}, s{ST1}, 3\ns_add_u32 s{ST2}, s{ST2}, s{ST1}\ns_lshl_b32 s{ST1}, s{SXC}, 8')
    tile_addr(g, VAO, ST2, 2048, ST1)
    g.A(f's_mul_i32 s{ST2}, s{SU}, 224\ns_min_u32 s{ST1}, s{SW}, 6\ns_lshl_b32 s{ST1}, s{ST1}, 5\ns_add_u32 s{ST2}, s{ST2}, s{ST1}\ns_lshl_b32 s{ST1}, s{SXC}, 8')
    tile_addr(g, VA2, ST2, 2048, ST1)
    p1_addr(g, VA1B, 16)
    g.A(f'v_lshrrev_b32 v{VT}, 3, v{VL}\nv_lshlrev_b32 v{VT}, 5, v{VT}\nv_lshl_add_u32 v{VT}, v{VB}, 4, v{VT}\nds_read_b128 v[{VD}:{VD+3}], v{VT} offset:0'.replace('offset:0', '').replace(f'ds_read_b128', f'v_add_u32 v{VT}, {L_Q}, v{VT}\nds_read_b128'))
    g.A(f's_waitcnt lgkmcnt(0)\nv_add_f32 v{VD}, v{VD}, v{VD+2}\nv_add_f32 v{VD+1}, v{VD+1}, v{VD+3}')
    pair_reduce_s3(g, VD, VD + 2)
    g.A(f'v_mov_b32 v{VD+1}, v{VD}\nv_permlane32_swap_b32 v{VD}, v{VD+1}')
    ln_scalars(g, s1, s2, VD + 2)
    g.A(f'v_lshlrev_b32 v{VLN}, 16, v{VXR}\nv_sub_f32 v{VLN}, v{VLN}, v{s1}')
    rb(g, VLN)
    g.A(f'v_rcp_f32 v{VD+4}, v{s2}\nv_mul_f32 v{VD+5}, v{VLN}, v{VD+4}\nv_fma_f32 v{VD+6}, -v{VD+5}, v{s2}, v{VLN}\nv_fma_f32 v{VLN}, v{VD+6}, v{VD+4}, v{VD+5}')
    rb(g, VLN)
    g.A(f's_lshr_b32 s{ST1}, s{SU}, 2\ns_lshl_b32 s{ST2}, s{ST1}, 17\ns_and_b32 s{ST0}, s{SU}, 3\ns_lshl_b32 s{ST0}, s{ST0}, 11\ns_add_u32 s{ST2}, s{ST2}, s{ST0}')
    g.A(f's_lshr_b32 s{ST0}, s{SW}, 1\ns_lshl_b32 s{ST0}, s{ST0}, 9\ns_add_u32 s{ST2}, s{ST2}, s{ST0}\ns_and_b32 s{ST0}, s{SW}, 1\ns_lshl_b32 s{ST3}, s{ST0}, 7\ns_add_u32 s{ST2}, s{ST2}, s{ST3}\ns_add_u32 s{ST2}, s{ST2}, {OP:#x}')
    g.A(f'v_lshrrev_b32 v{VD}, 3, v{VL}\nv_and_b32 v{VD+1}, 7, v{VL}')
    g.A(f'v_lshlrev_b32 v{VGO}, 13, v{VD}\nv_lshl_add_u32 v{VGO}, v{VD+1}, 4, v{VGO}\nv_add_u32 v{VGO}, s{ST2}, v{VGO}')
    g.A(f's_lshl_b32 s{ST2}, s{ST1}, 11\ns_lshl_b32 s{ST3}, s{ST0}, 6\ns_add_u32 s{ST2}, s{ST2}, s{ST3}\ns_add_u32 s{ST2}, s{ST2}, {MLP:#x}')
    g.A(f'v_lshlrev_b32 v{VGM}, 7, v{VD}\nv_lshl_add_u32 v{VGM}, v{VD+1}, 3, v{VGM}\nv_add_u32 v{VGM}, s{ST2}, v{VGM}')
    g.A(f's_mul_i32 s{ST0}, s{SU}, 224\ns_min_u32 s{ST1}, s{SW}, 6\ns_lshl_b32 s{ST1}, s{ST1}, 5\ns_add_u32 s{ST0}, s{ST0}, s{ST1}\ns_lshr_b32 s{ST1}, s{ST0}, 7\ns_and_b32 s{ST0}, s{ST0}, 127')
    g.A(f's_lshl_b32 s{ST2}, s{ST1}, 13\ns_lshl_b32 s{ST0}, s{ST0}, 3\ns_add_u32 s{ST2}, s{ST2}, s{ST0}\ns_add_u32 s{ST2}, s{ST2}, {HIDP:#x}')
    g.A(f'v_lshlrev_b32 v{VGH}, 10, v{VD}\nv_lshl_add_u32 v{VGH}, v{VD+1}, 4, v{VGH}\nv_add_u32 v{VGH}, s{ST2}, v{VGH}')
    g.A(f's_lshr_b32 s{ST1}, s{ST1}, 1\ns_lshl_b32 s{ST1}, s{ST1}, 7\ns_add_u32 s{ST1}, s{ST1}, {STP:#x}')
    g.A(f'v_lshlrev_b32 v{VGS}, 11, v{VD}\nv_lshl_add_u32 v{VGS}, v{VB}, 3, v{VGS}\nv_add_u32 v{VGS}, s{ST1}, v{VGS}')
    emit(cfg.get('A_e1', 8), cfg.get('A_w1', 4))
    g.A(f's_lshl_b32 s{ST2}, s{SXC}, 13\ns_add_u32 s{ST2}, s{ST2}, {MODP:#x}\ns_add_u32 s{ST3}, s{ST2}, 0x10000')
    sa, ca = VD, VD + 4
    poll(g, [(sa, 4, VG16, ST2, 0), (ca, 4, VG16, ST3, 0)]); g.stamp(3)
    emit(cfg.get('A_e2', 10), 0)
    rscatter(g, [sa, ca])
    rb_pair(g, sa, ca, VD + 1)
    g.A(f'v_add_f32 v{ca}, 1.0, v{ca}'); rb(g, ca)
    g.A(f'v_mul_f32 v{ca}, v{ca}, v{VLN}'); rb(g, ca)
    g.A(f'v_add_f32 v{ca}, v{ca}, v{sa}\nv_cvt_pk_bf16_f32 v{VX}, v{ca}, v{ca}')
    gemv(g, [VX], [[WQ + 8 * i, WQ + 8 * i + 4] for i in range(4)], VACC)
    g.A(f's_lshl_b32 s{ST2}, s{SU}, 4\ns_add_u32 s{ST2}, s{ST2}, s{SXC}\ns_lshl_b32 s{ST2}, s{ST2}, 10\ns_add_u32 s{ST2}, s{ST2}, {QP:#x}')
    red_write(g, VACC, 1, VRQ)
    barrier(g)
    publish(g, 1, 2, ST2, 8192); g.stamp(4)
    if cfg.get('A_p1b_first', 0):
        emit(cfg.get('A_e3a', 16), cfg.get('A_w2', 4))
    else:
        emit(cfg.get('A_e3', 20), cfg.get('A_w2', 4))
    g.wait('p1b')
    p1_stage(g, W1B, 3, 16); g.stamp(5)
    emit(cfg.get('A_e3', 20), cfg.get('A_w2', 4))
    g.A(f's_mov_b32 s{ST3}, 0x10000')
    O0, O1, ML = VD, VD + 8, VD + 16
    if cfg.get('probe3', 1):
        poll(g, [(ML, 2, VGM, None, 0), (ML + 2, 2, VGM, None, 1024)])
        poll(g, [(O0, 4, VGO, None, 0), (O0 + 4, 4, VGO, None, 256), (O1, 4, VGO, ST3, 0), (O1 + 4, 4, VGO, ST3, 256)]); g.stamp(6)
    else:
        poll(g, [(ML, 2, VGM, None, 0), (ML + 2, 2, VGM, None, 1024), (O0, 4, VGO, None, 0), (O0 + 4, 4, VGO, None, 256),
                 (O1, 4, VGO, ST3, 0), (O1 + 4, 4, VGO, ST3, 256)]); g.stamp(6)
    emit(cfg.get('A_e4', 22), 0)
    M = VD + 20
    g.A(f'v_max_f32 v{M}, v{ML}, v{ML+2}\nv_max_f32_dpp v{M}, v{M}, v{M} row_ror:8 {DPPF}')
    allreduce_kq(g, [M], [M + 1], 'max')
    g.A(f'v_sub_f32 v{ML}, v{ML}, v{M}\nv_sub_f32 v{ML+2}, v{ML+2}, v{M}\nv_exp_f32 v{ML}, v{ML}\nv_exp_f32 v{ML+2}, v{ML+2}')
    g.A(f'v_mul_f32 v{M}, v{ML}, v{ML+1}\nv_fmac_f32 v{M}, v{ML+2}, v{ML+3}')
    for i in range(8): g.A(f'v_mul_f32 v{O0+i}, v{O0+i}, v{ML}')
    g.A(f'v_add_f32_dpp v{M}, v{M}, v{M} row_ror:8 {DPPF}')
    for i in range(8): g.A(f'v_fmac_f32 v{O0+i}, v{O1+i}, v{ML+2}')
    allreduce_kq(g, [M], [M + 1])
    rscatter(g, [O0, O0 + 4])
    g.A(f'v_rcp_f32 v{M}, v{M}')
    g.A(f'v_mul_f32 v{O0}, v{O0}, v{M}\nv_mul_f32 v{O0+4}, v{O0+4}, v{M}')
    g.A(f'v_cvt_pk_bf16_f32 v{VX}, v{O0}, v{O0}\nv_cvt_pk_bf16_f32 v{VX+1}, v{O0+4}, v{O0+4}')
    gemv(g, [VX, VX + 1], [[WO + 4 * i] for i in range(8)], [VACC[0]])
    g.A(f's_lshl_b32 s{ST2}, s{SXC}, 4\ns_add_u32 s{ST2}, s{ST2}, s{SU}\ns_lshl_b32 s{ST2}, s{ST2}, 10\ns_add_u32 s{ST2}, s{ST2}, {ATP:#x}')
    red_write(g, [VACC[0]], 4)
    barrier(g)
    publish(g, 4, 1, ST2, 0); g.stamp(7)
    for r in range(4): g.A(f'v_mov_b32 v{VACC[0]+r}, 0')
    g.A(f's_cmp_eq_u32 s{SW}, 7\ns_cbranch_scc1 L_A_p6skip')
    emit(28, cfg.get('A_w3', 4))
    g.A(f's_mov_b32 s{ST2}, {HTERM:#x}\ns_mov_b32 s{ST3}, {2*HTERM:#x}')
    BV, CV, AV, SS = VD + 8, VD + 16, VD, VD + 24
    poll(g, [(BV, 4, VGH, ST2, 0), (BV + 4, 4, VGH, ST2, 128), (CV, 4, VGH, ST3, 0), (CV + 4, 4, VGH, ST3, 128)]); g.stamp(8)
    rscatter(g, [BV, BV + 4, CV, CV + 4])
    poll(g, [(SS, 2, VGS, None, 0), (AV, 4, VGH, None, 0), (AV + 4, 4, VGH, None, 128)]); g.stamp(9)
    pair_reduce_s3(g, SS, SS + 2)
    g.A(f'v_mov_b32 v{SS+1}, v{SS}\nv_permlane32_swap_b32 v{SS}, v{SS+1}')
    rscatter(g, [AV, AV + 4])
    ln_scalars(g, SS, SS + 1, SS + 2)
    g.A(f'v_rcp_f32 v{SS+1}, v{SS+1}')
    for i in (0, 4): g.A(f'v_fma_f32 v{AV+i}, -v{SS}, v{BV+i}, v{AV+i}')
    for i in (0, 4): g.A(f'v_fma_f32 v{AV+i}, v{AV+i}, v{SS+1}, v{CV+i}')
    for i in (0, 4): g.A(f'v_max_f32 v{AV+i}, 0, v{AV+i}')
    g.A(f'v_cvt_pk_bf16_f32 v{VX}, v{AV}, v{AV}\nv_cvt_pk_bf16_f32 v{VX+1}, v{AV+4}, v{AV+4}')
    gemv(g, [VX, VX + 1], [[W2 + 4 * i] for i in range(8)], [VACC[0]])
    g.A('L_A_p6skip:')
    g.A(f's_lshl_b32 s{ST2}, s{SXC}, 4\ns_add_u32 s{ST2}, s{ST2}, s{SU}\ns_lshl_b32 s{ST2}, s{ST2}, 10\ns_add_u32 s{ST2}, s{ST2}, {OUTP:#x}')
    red_write(g, [VACC[0]], 5)
    barrier(g)
    publish(g, 5, 1, ST2, 0); g.stamp(10)
    finish(g)

def prog_B(g, head):
    cfg = g.cfg
    KF, VFR, PF, W1B, W1 = 80, 112, 144, 176, 192
    VAK = [224, 225, 226, 227]; VAV = [228, 229]
    VA1B, VA5 = 230, 231
    VC, VXR = 232, 233
    VGA, VTD, VX2, VST, VSR = 234, 235, 236, 237, 238
    VQG, VQW, VQR, VVR, VMX, VMW, VPW, VPR, VOS = 240, 241, 242, 243, 244, 245, 246, 247, 248
    def dma(name, i, srdn, lbase, va, win):
        g.window(win)
        if i % 4 == 0:
            g.A(f's_lshl_b32 s{ST0}, s{SW}, 13\ns_add_u32 m0, s{ST0}, {lbase + (i//4)*4096}')
        o = f' offset:{(i%4)*1024}' if i % 4 else ''
        g.A(f'buffer_load_dwordx4 v{va}, s[{srdn}:{srdn+3}], s{SK0 if i < 4 else SK1} offen{o} nt lds'); g.issued(name)
    k_l = [lambda win, i=i: dma('k', i, S_K, L_K, VAK[i % 4], win) for i in range(8)]
    v_l = [lambda win, i=i: dma('v', i, S_V, L_V, VAV[i % 2], win) for i in range(8)]
    p1b_l = [lambda win, i=i: wload(g, 'p1b', W1B + 4 * i, VA1B, S_MOD, 4 * i * 12288, 0, win) for i in range(4)]
    w1_l = [lambda win, i=i, c=c: wload(g, 'w1', W1 + 8 * i + 4 * c, VA5, S_W1, 4 * i * 7168, c * 256, win) for i in range(4) for c in range(2)]
    seq = k_l + v_l + p1b_l + w1_l
    pos = [0]
    def emit(upto, win):
        while pos[0] < upto: seq[pos[0]](win); pos[0] += 1
    if head:
        g.A(f's_lshl_b32 s{SK0}, s{SXC}, 23\ns_lshl_b32 s{ST1}, s{SU}, 16\ns_add_u32 s{SK0}, s{SK0}, s{ST1}\ns_lshl_b32 s{ST1}, s{SW}, 13\ns_add_u32 s{SK0}, s{SK0}, s{ST1}\ns_add_u32 s{SK0}, s{SK0}, {28672*256:#x}')
        g.A(f's_add_u32 s{SK1}, s{SK0}, 4096')
        g.A(f'v_xor_b32 v{VT}, v{VN}, v{VKQ}\nv_lshlrev_b32 v{VT}, 4, v{VT}\nv_lshl_add_u32 v{VAK[0]}, v{VKQ}, 8, v{VT}')
        for i in range(1, 4): g.A(f'v_xor_b32 v{VAK[i]}, {64*i}, v{VAK[0]}')
        g.A(f'v_lshlrev_b32 v{VT}, 1, v{VKQ}\nv_xor_b32 v{VT}, v{VN}, v{VT}\nv_lshlrev_b32 v{VT}, 4, v{VT}\nv_lshl_add_u32 v{VAV[0]}, v{VKQ}, 8, v{VT}\nv_xor_b32 v{VAV[1]}, 128, v{VAV[0]}')
        srdc(g, S_K, 0x4000000); srdc(g, S_V, 0x4000000)
        g.A('s_waitcnt lgkmcnt(0)')
        emit(cfg.get('B_e0', 3), 0)
        emit(cfg.get('B_e1', 16), cfg.get('B_w0', 4))
        g.A('s_branch L_progB')
        return
    pos[0] = cfg.get('B_e1', 16)
    zero_stamps(g); g.stamp(12)
    late_consts(g)
    ve_const(g)
    load_c(g, VC)
    load_xr(g, VXR)
    lane_consts(g)
    p1_addr(g, VA1B, 32)
    g.A(f's_lshl_b32 s{ST2}, s{SXC}, 7\ns_lshl_b32 s{ST1}, s{SW}, 4\ns_add_u32 s{ST2}, s{ST2}, s{ST1}\ns_min_u32 s{ST1}, s{SU}, 13\ns_lshl_b32 s{ST1}, s{ST1}, 9')
    tile_addr(g, VA5, ST2, 7168, ST1)
    g.A(f's_and_b32 s{ST0}, s{SXC}, 3\ns_lshl_b32 s{ST0}, s{ST0}, 3\ns_add_u32 s{ST0}, s{ST0}, s{SW}\ns_lshl_b32 s{ST0}, s{ST0}, 13')
    g.A(f's_lshr_b32 s{ST1}, s{SXC}, 2\ns_lshl_b32 s{ST1}, s{ST1}, 9\ns_add_u32 s{ST0}, s{ST0}, s{ST1}\ns_add_u32 s{ST0}, s{ST0}, {QP:#x}')
    g.A(f'v_and_b32 v{VT}, 31, v{VL}\nv_lshrrev_b32 v{VQG}, 5, v{VL}\nv_lshlrev_b32 v{VQG}, 12, v{VQG}\nv_lshl_add_u32 v{VQG}, v{VT}, 4, v{VQG}\nv_add_u32 v{VQG}, s{ST0}, v{VQG}')
    g.A(f's_mul_i32 s{ST0}, s{SW}, 272\ns_add_u32 s{ST0}, s{ST0}, {L_Q}\nv_lshl_add_u32 v{VQW}, v{VT}, 3, s{ST0}\nv_lshrrev_b32 v{VT}, 5, v{VL}\nv_lshl_add_u32 v{VQW}, v{VT}, 2, v{VQW}')
    g.A(f'v_and_b32 v{VD}, 7, v{VL}\nv_mul_u32_u24 v{VQR}, 272, v{VD}\nv_lshl_add_u32 v{VQR}, v{VKQ}, 4, v{VQR}\nv_add_u32 v{VQR}, {L_Q}, v{VQR}')
    g.A(f'v_lshlrev_b32 v{VMX}, 5, v{VD}\nv_add_u32 v{VMX}, {L_MAX}, v{VMX}\ns_lshl_b32 s{ST0}, s{SW}, 2\nv_add_u32 v{VMW}, s{ST0}, v{VMX}')
    g.A(f'v_lshrrev_b32 v{VT}, 2, v{VL}')
    g.A(f'v_and_b32 v{VD+4}, 7, v{VT}\nv_lshlrev_b32 v{VD+4}, 1, v{VD+4}\nv_bfe_u32 v{VD+5}, v{VL}, 1, 1\ns_lshl_b32 s{ST0}, s{SW}, 1\nv_add_u32 v{VD+5}, s{ST0}, v{VD+5}\nv_xor_b32 v{VD+4}, v{VD+4}, v{VD+5}')
    g.A(f'v_lshlrev_b32 v{VVR}, 8, v{VT}\nv_lshl_add_u32 v{VVR}, v{VD+4}, 4, v{VVR}\nv_and_b32 v{VD+5}, 1, v{VL}\nv_lshl_add_u32 v{VVR}, v{VD+5}, 3, v{VVR}\nv_add_u32 v{VVR}, {L_V}, v{VVR}')
    g.A(f'v_lshlrev_b32 v{VPR}, 4, v{VL}\nv_add_u32 v{VPR}, {L_PX}, v{VPR}\ns_lshl_b32 s{ST0}, s{SW}, 10\nv_add_u32 v{VPW}, s{ST0}, v{VPR}')
    g.A(f'v_and_b32 v{VOS}, 3, v{VL}\nv_lshlrev_b32 v{VOS}, 4, v{VOS}\nv_lshl_add_u32 v{VOS}, v{VB}, 7, v{VOS}\nv_lshl_add_u32 v{VOS}, v{VKQ}, 8, v{VOS}')
    g.A(f's_lshl_b32 s{ST0}, s{SW}, 3\ns_add_u32 s{ST0}, s{ST0}, {L_STAT}\nv_lshl_add_u32 v{VST}, v{VB}, 6, s{ST0}\nv_lshrrev_b32 v{VT}, 5, v{VL}\nv_lshl_add_u32 v{VST}, v{VT}, 2, v{VST}')
    g.A(f'v_and_b32 v{VSR}, 0x38, v{VL}\nv_lshl_add_u32 v{VSR}, v{VB}, 6, v{VSR}\nv_add_u32 v{VSR}, {L_STAT}, v{VSR}')
    emit(cfg.get('B_e2', 16), cfg.get('B_w1', 4))
    g.wait('k'); g.stamp(1)
    a0 = VD
    g.A(f'v_xor_b32 v{VT}, v{VN}, v{VKQ}\nv_lshlrev_b32 v{VT}, 4, v{VT}\nv_lshl_add_u32 v{a0}, v{VN}, 8, v{VT}\ns_lshl_b32 s{ST0}, s{SW}, 13\nv_add_u32 v{a0}, s{ST0}, v{a0}')
    for i in range(1, 4): g.A(f'v_xor_b32 v{a0+i}, {64*i}, v{a0}')
    for t in range(2):
        for i in range(4):
            r = KF + 16 * t + 4 * i
            g.A(f'ds_read_b128 v[{r}:{r+3}], v{a0+i} offset:{L_K + t*4096}')
    g.wait('xr'); g.stamp(11)
    silu(g, VC)
    g.A(f'v_lshlrev_b32 v{VX2}, 16, v{VXR}')
    poll(g, [(VD + 4 * t, 4, VQG, None, t * 1024) for t in range(4)]); g.stamp(2)
    emit(cfg.get('B_e3', 18), 0)
    for i in range(4): g.A(f'v_add_f32 v{VD+i}, v{VD+i}, v{VD+4+i}\nv_add_f32 v{VD+8+i}, v{VD+8+i}, v{VD+12+i}')
    for i in range(4): g.A(f'v_add_f32 v{VD+i}, v{VD+i}, v{VD+8+i}')
    g.A(f'v_permlane32_swap_b32 v{VD}, v{VD+2}\nv_permlane32_swap_b32 v{VD+1}, v{VD+3}\nv_add_f32 v{VD}, v{VD}, v{VD+2}\nv_add_f32 v{VD+1}, v{VD+1}, v{VD+3}')
    g.A(f'v_cvt_pk_bf16_f32 v{VD}, v{VD}, v{VD+1}\nds_write_b32 v{VQW}, v{VD}')
    barrier(g)
    QF = VD
    for i in range(4): g.A(f'ds_read_b128 v[{QF+4*i}:{QF+4*i+3}], v{VQR} offset:{64*i}')
    nearly = 8
    trs = [(s, t) for s in range(8) for t in range(2)]
    for s, t in trs[:nearly]:
        r = VFR + 4 * s + 2 * t
        g.A(f'ds_read_b64_tr_b16 v[{r}:{r+1}], v{VVR} offset:{s*8192 + t*4096}')
    S = VD + 16
    for i in range(4):
        g.A(f's_waitcnt lgkmcnt({nearly + 3 - i})')
        for t in range(2):
            acc = S + 4 * t; k = KF + 16 * t + 4 * i
            cin = '0' if i == 0 else f'v[{acc}:{acc+3}]'
            g.A(f'v_mfma_f32_16x16x32_bf16 v[{acc}:{acc+3}], v[{k}:{k+3}], v[{QF+4*i}:{QF+4*i+3}], {cin}')
    g.A('s_waitcnt lgkmcnt(6)')
    for s, t in trs[nearly:]:
        r = VFR + 4 * s + 2 * t
        g.A(f'ds_read_b64_tr_b16 v[{r}:{r+1}], v{VVR} offset:{s*8192 + t*4096}')
    sr = [S + i for i in range(8)]
    tm = [VD + 24, VD + 25, VD + 26, VD + 27]
    rb_list(g, sr, tm)
    for r in sr: g.A(f'v_mul_f32 v{r}, {SCALE:#x}, v{r}')
    rb_list(g, sr, tm)
    m = VD + 28
    g.A(f'v_max3_f32 v{m}, v{S}, v{S+1}, v{S+2}\nv_max3_f32 v{m+1}, v{S+3}, v{S+4}, v{S+5}\nv_max3_f32 v{m}, v{m}, v{S+6}, v{S+7}\nv_max_f32 v{m}, v{m}, v{m+1}')
    allreduce_kq(g, [m], [m + 1], 'max')
    g.A(f'ds_write_b32 v{VMW}, v{m}')
    barrier(g)
    g.A(f'ds_read_b128 v[{VD}:{VD+3}], v{VMX}\nds_read_b128 v[{VD+4}:{VD+7}], v{VMX} offset:16\ns_mov_b32 s{ST0}, {LOG2E:#x}\ns_waitcnt lgkmcnt(0)')
    g.A(f'v_max3_f32 v{m}, v{VD}, v{VD+1}, v{VD+2}\nv_max3_f32 v{m+1}, v{VD+3}, v{VD+4}, v{VD+5}\nv_max3_f32 v{m}, v{m}, v{VD+6}, v{VD+7}\nv_max_f32 v{m}, v{m}, v{m+1}')
    g.A(f'v_mul_f32 v{m}, s{ST0}, v{m}\nv_and_or_b32 v{m}, v{m}, s{SMASK}, v{VTAG}')
    for r in sr: g.A(f'v_fma_f32 v{r}, v{r}, s{ST0}, -v{m}')
    for r in sr: g.A(f'v_exp_f32 v{r}, v{r}')
    for i in range(4): g.A(f'v_cvt_pk_bf16_f32 v{tm[i]}, v{S+2*i}, v{S+2*i+1}')
    g.A(f'ds_write_b128 v{VPW}, v[{tm[0]}:{tm[3]}]')
    g.A(f'v_add_f32 v{S}, v{S}, v{S+1}\nv_add_f32 v{S+2}, v{S+2}, v{S+3}\nv_add_f32 v{S+4}, v{S+4}, v{S+5}\nv_add_f32 v{S+6}, v{S+6}, v{S+7}')
    g.A(f'v_add_f32 v{S}, v{S}, v{S+2}\nv_add_f32 v{S+4}, v{S+4}, v{S+6}\nv_add_f32 v{S}, v{S}, v{S+4}')
    allreduce_kq(g, [S], [S + 1])
    g.A(f'ds_write_b32 v{VMW}, v{S} offset:256')
    barrier(g)
    g.A(f'ds_read_b128 v[{VD}:{VD+3}], v{VMX} offset:256\nds_read_b128 v[{VD+4}:{VD+7}], v{VMX} offset:272')
    for s in range(8): g.A(f'ds_read_b128 v[{PF+4*s}:{PF+4*s+3}], v{VPR} offset:{s*1024}')
    g.A(f's_and_b32 s{ST2}, s{SXC}, 3\ns_lshl_b32 s{ST2}, s{ST2}, 4\ns_add_u32 s{ST2}, s{ST2}, s{SU}\ns_lshr_b32 s{ST1}, s{SXC}, 2')
    g.A(f's_lshl_b32 s{ST3}, s{ST2}, 7\ns_lshl_b32 s{ST0}, s{ST1}, 5\ns_add_u32 s{ST3}, s{ST3}, s{ST0}\ns_add_u32 s{ST3}, s{ST3}, {MLP:#x}')
    g.A(f's_lshl_b32 s{ST2}, s{ST2}, 13\ns_lshl_b32 s{ST0}, s{SW}, 10\ns_add_u32 s{ST2}, s{ST2}, s{ST0}\ns_lshl_b32 s{ST0}, s{ST1}, 6\ns_add_u32 s{ST2}, s{ST2}, s{ST0}\ns_add_u32 s{ST2}, s{ST2}, {OP:#x}')
    g.A(f's_cmp_lg_u32 s{SW}, 7\ns_cbranch_scc1 L_B_noml')
    g.A('s_waitcnt lgkmcnt(8)')
    g.A(f'v_add_f32 v{VD}, v{VD}, v{VD+1}\nv_add_f32 v{VD+2}, v{VD+2}, v{VD+3}\nv_add_f32 v{VD+4}, v{VD+4}, v{VD+5}\nv_add_f32 v{VD+6}, v{VD+6}, v{VD+7}')
    g.A(f'v_add_f32 v{VD}, v{VD}, v{VD+2}\nv_add_f32 v{VD+4}, v{VD+4}, v{VD+6}\nv_add_f32 v{m+1}, v{VD}, v{VD+4}')
    g.A(f'v_and_or_b32 v{m+1}, v{m+1}, s{SMASK}, v{VTAG}\nv_lshrrev_b32 v{VT}, 1, v{VOS}')
    g.A(f's_mov_b64 exec, 0xff\nbuffer_store_dwordx2 v[{m}:{m+1}], v{VT}, s[{S_WS}:{S_WS+3}], s{ST3} offen sc1\ns_mov_b64 exec, -1')
    g.A('L_B_noml:')
    acc = VACC[0]
    for s in range(8):
        g.A(f's_waitcnt lgkmcnt({7 - s})')
        cin = '0' if s == 0 else f'v[{acc}:{acc+3}]'
        g.A(f'v_mfma_f32_16x16x32_bf16 v[{acc}:{acc+3}], v[{VFR+4*s}:{VFR+4*s+3}], v[{PF+4*s}:{PF+4*s+3}], {cin}')
    g.A(f's_mov_b32 exec_lo, 0x00ff00ff\ns_mov_b32 exec_hi, 0x00ff00ff')
    g.A(f'v_and_or_b32 v{acc}, v{acc}, s{SMASK}, v{VTAG}\nv_and_or_b32 v{acc+3}, v{acc+3}, s{SMASK}, v{VTAG}')
    g.A(f'buffer_store_dwordx4 v[{acc}:{acc+3}], v{VOS}, s[{S_WS}:{S_WS+3}], s{ST2} offen sc1'); g.issued('st')
    g.A('s_mov_b64 exec, -1'); g.stamp(3)
    emit(20, cfg.get('B_w2', 4))
    g.A(f's_cmp_ge_u32 s{SU}, 14\ns_cbranch_scc1 L_B_spare')
    vm_save = list(g.vm)
    emit(cfg.get('B_e4', 24), cfg.get('B_w2', 4))
    g.wait('p1b')
    p1_stage(g, W1B, 0, 32); g.stamp(4)
    emit(28, cfg.get('B_w2', 4))
    g.A(f's_lshl_b32 s{ST1}, s{SXC}, 13\ns_add_u32 s{ST1}, s{ST1}, {MODP + 16*8192:#x}\ns_add_u32 s{ST2}, s{ST1}, 0x10000\ns_add_u32 s{ST3}, s{ST1}, 0x20000')
    ga, sb, cb = VD, VD + 4, VD + 8
    poll(g, [(ga, 4, VG16, ST1, 0), (sb, 4, VG16, ST2, 0), (cb, 4, VG16, ST3, 0)]); g.stamp(5)
    rscatter(g, [ga, sb, cb])
    rb_pair(g, ga, cb, VD + 1)
    g.A(f'v_mov_b32 v{VGA}, v{ga}\nv_add_f32 v{cb}, 1.0, v{cb}')
    g.A(f'v_cvt_pk_bf16_f32 v{VTD}, v{cb}, v{cb}\nv_cvt_pk_bf16_f32 v{VX}, v{sb}, v{sb}')
    wr = [[W1 + 8 * i, W1 + 8 * i + 4] for i in range(4)]
    gemv(g, [VTD], wr, VACC)
    A2 = [VD + 16, VD + 20]
    gemv(g, [VX], wr, A2)
    red_write(g, VACC, 1)
    red_write(g, A2, 3)
    g.A(f's_lshl_b32 s{ST2}, s{SU}, 4\ns_add_u32 s{ST2}, s{ST2}, s{SXC}\ns_lshl_b32 s{ST2}, s{ST2}, 10\ns_add_u32 s100, s{ST2}, {HIDP:#x}')
    g.A(f's_add_u32 s{ST2}, s100, {HTERM:#x}\ns_add_u32 s{ST3}, s100, {2*HTERM:#x}')
    barrier(g)
    publish(g, 1, 2, ST2, 8192)
    publish(g, 3, 2, ST3, 8192); g.stamp(6)
    g.A(f'v_and_b32 v{VTD}, s{SHI}, v{VTD}')
    g.A(f's_lshl_b32 s{ST2}, s{SXC}, 14\ns_add_u32 s{ST2}, s{ST2}, {ATP:#x}\ns_add_u32 s{ST3}, s{ST2}, 0x2000')
    poll(g, [(VD, 4, VG16, ST2, 0), (VD + 4, 4, VG16, ST3, 0)]); g.stamp(7)
    for i in range(4): g.A(f'v_add_f32 v{VD+i}, v{VD+i}, v{VD+4+i}')
    rscatter(g, [VD])
    rb(g, VD)
    g.A(f'v_mul_f32 v{VD}, v{VD}, v{VGA}'); rb(g, VD)
    g.A(f'v_add_f32 v{VX2}, v{VX2}, v{VD}'); rb(g, VX2)
    g.A(f'v_mul_f32 v{VD}, v{VX2}, v{VTD}\nv_cvt_pk_bf16_f32 v{VX}, v{VD}, v{VD}')
    gemv(g, [VX], wr, VACC)
    g.A(f'v_mov_b32 v{VD}, v{VX2}\nv_mul_f32 v{VD+1}, v{VX2}, v{VX2}')
    g.A(f'v_permlane32_swap_b32 v{VD}, v{VD+1}\nv_add_f32 v{VD}, v{VD}, v{VD+1}\nv_mov_b32 v{VD+1}, v{VD}\nv_permlane16_swap_b32 v{VD}, v{VD+1}\nv_add_f32 v{VD}, v{VD}, v{VD+1}')
    red_write(g, VACC, 5)
    for mode in ['quad_perm:[1,0,3,2]', 'quad_perm:[2,3,0,1]']:
        g.A(f'v_add_f32_dpp v{VD}, v{VD}, v{VD} {mode} {DPPF}')
    g.A(f'ds_write_b32 v{VST}, v{VD}')
    g.A(f's_mov_b32 s{ST2}, s100')
    barrier(g)
    g.A(f'ds_read_b64 v[{VD+8}:{VD+9}], v{VSR}')
    publish(g, 5, 2, ST2, 8192)
    g.A(f's_cmp_lg_u32 s{SW}, 2\ns_cbranch_scc1 L_B_nostat')
    g.A(f's_lshl_b32 s{ST2}, s{SXC}, 4\ns_add_u32 s{ST2}, s{ST2}, s{SU}\ns_lshl_b32 s{ST2}, s{ST2}, 7\ns_add_u32 s{ST2}, s{ST2}, {STP:#x}')
    pair_reduce_s3(g, VD + 8, VD + 10)
    g.A(f'v_and_or_b32 v{VD+8}, v{VD+8}, s{SMASK}, v{VTAG}\nv_lshrrev_b32 v{VT}, 5, v{VL}\nv_lshlrev_b32 v{VT}, 2, v{VT}\nv_lshl_add_u32 v{VT}, v{VB}, 3, v{VT}')
    g.A(f's_mov_b32 exec_lo, 0x11\ns_mov_b32 exec_hi, 0x11\nbuffer_store_dword v{VD+8}, v{VT}, s[{S_WS}:{S_WS+3}], s{ST2} offen sc1\ns_mov_b64 exec, -1')
    g.A('L_B_nostat:'); g.stamp(8)
    g.A(f's_cmp_lg_u32 s{SU}, 0\ns_cbranch_scc1 L_B_done')
    g.A(f's_lshl_b32 s{ST1}, s{SXC}, 13\ns_add_u32 s{ST1}, s{ST1}, {MODP + 40*8192:#x}')
    GB = VD + 12
    poll(g, [(GB, 4, VG16, ST1, 0)])
    rscatter(g, [GB]); rb(g, GB)
    g.A(f's_lshl_b32 s{ST1}, s{SXC}, 8\ns_lshl_b32 s{ST0}, s{SW}, 5\ns_add_u32 s{ST1}, s{ST1}, s{ST0}')
    g.A(f's_lshl_b32 s{ST2}, s{SXC}, 14\ns_add_u32 s{ST2}, s{ST2}, {OUTP:#x}\ns_add_u32 s{ST3}, s{ST2}, 0x2000')
    poll(g, [(VD, 4, VG16, ST2, 0), (VD + 4, 4, VG16, ST3, 0)]); g.stamp(9)
    for i in range(4): g.A(f'v_add_f32 v{VD+i}, v{VD+i}, v{VD+4+i}')
    rscatter(g, [VD])
    rb(g, VD)
    g.A(f'v_mul_f32 v{VD}, v{VD}, v{GB}'); rb(g, VD)
    g.A(f'v_add_f32 v{VD}, v{VX2}, v{VD}\nv_cvt_pk_bf16_f32 v{VD}, v{VD}, v{VD}')
    g.A(f's_mov_b32 exec_lo, 0x00ff00ff\ns_mov_b32 exec_hi, 0x00ff00ff')
    g.A(f'buffer_store_short v{VD}, v{VE}, s[{S_OUT}:{S_OUT+3}], s{ST1} offen')
    g.A('s_mov_b64 exec, -1')
    g.A(f's_or_b32 s{ST0}, s{SXC}, s{SW}\ns_cmp_lg_u32 s{ST0}, 0\ns_cbranch_scc1 L_B_done')
    g.A(f'v_mov_b32 v{VD+2}, s{STAG}\nv_mov_b32 v{VT}, 0\ns_mov_b64 exec, 1\nbuffer_store_dword v{VD+2}, v{VT}, s[{S_WS}:{S_WS+3}], 0 offen sc1\ns_mov_b64 exec, -1')
    g.A('L_B_done:'); g.stamp(10)
    finish(g)
    g.A('L_B_spare:')
    g.vm = vm_save
    g.wait('p1b')
    p1_stage(g, W1B, 0, 32); g.stamp(4)
    finish(g)

HEAD = open('adaLN_cond__sliding_block_cached__dense_activation_relu__decode.s.ref').read().split('; Override launch')[0]

def generate(cfg):
    g = G(cfg)
    prologue(g)
    vm0 = list(g.vm)
    g.A('s_cmp_ge_u32 s2, 128\ns_cbranch_scc1 L_headB')
    prog_A(g, True); vmA = list(g.vm)
    g.A('L_headB:'); g.vm = list(vm0)
    prog_B(g, True); vmB = list(g.vm)
    g.A('L_progA:'); g.vm = vmA
    prog_A(g, False)
    g.A('L_progB:'); g.vm = vmB
    prog_B(g, False)
    g.A('L_exit:\ns_endpgm')
    body = pad_hazards(g.L)
    out = [HEAD.rstrip(), f'; @launch grid=(256,1,1) block=(512,1,1) lds={LDS_BYTES}',
           '.amdgcn_target "amdgcn-amd-amdhsa--gfx950"', '.text', f'.globl {KNAME}', '.p2align 8', f'.type {KNAME},@function', f'{KNAME}:']
    out += [(l if l.endswith(':') else '    ' + l) for l in body]
    out += ['.section .rodata,"a"', '.p2align 6', f'.amdhsa_kernel {KNAME}', '  .amdhsa_next_free_vgpr 256', '  .amdhsa_next_free_sgpr 102',
            '  .amdhsa_accum_offset 256', '  .amdhsa_group_segment_fixed_size 0', '  .amdhsa_kernarg_size 104', '  .amdhsa_user_sgpr_count 2',
            '  .amdhsa_user_sgpr_kernarg_segment_ptr 1', '  .amdhsa_system_sgpr_workgroup_id_x 1', '  .amdhsa_float_denorm_mode_32 3', '.end_amdhsa_kernel', '']
    return '\n'.join(out)

if __name__ == '__main__':
    cfg = {}
    for a in sys.argv[2:]:
        k, v = a.split('='); cfg[k] = int(v)
    open(sys.argv[1], 'w').write(generate(cfg))
```

```python
import sys
from asmlib import pad_hazards

KNAME = 'adaLN_cond__sliding_block_cached__dense_activation_relu__decode_kernel'

MODP = 0x1000
QP   = 0x80000
OP   = 0x100000
MLP  = 0x180000
ATP  = 0x1A0000
HIDP = 0x200000
HTERM = 28 * 8 * 1024
STP  = 0x2C0000
OUTP = 0x300000
PROF = 0x400000
WS_BYTES = 0x800000

RSTR = 1088; RBUF = 8 * RSTR
L_K = 0; L_V = 65536; L_RED = 131072; L_Q = L_RED + RBUF; L_PX = L_Q + 2304; L_MAX = L_PX + 8192
L_SUM = L_MAX + 256; L_STAT = L_SUM + 256; L_END = L_STAT + 128
LDS_BYTES = (L_END + 255) // 256 * 256

LOG2E = 0x3fb8aa3b
NLOG2E = 0xbfb8aa3b
SCALE = 0x3db504f3
SPIN_MAX = 30000
DPPF = 'row_mask:0xf bank_mask:0xf'

class G:
    def __init__(self, cfg):
        self.L = []; self.cfg = cfg; self.vm = []; self.nlab = 0
    def A(self, s):
        for line in s.split('\n'):
            line = line.strip()
            if line: self.L.append(line)
    def lab(self, p):
        self.nlab += 1; return f'L_{p}_{self.nlab}'
    def issued(self, name): self.vm.append(name)
    def wait(self, name):
        idx = [i for i, n in enumerate(self.vm) if n == name]
        if not idx: return
        n = len(self.vm) - 1 - idx[-1]
        self.A(f's_waitcnt vmcnt({n})'); self.vm = self.vm[idx[-1] + 1:]
    def window(self, win):
        if win and len(self.vm) >= win:
            self.A(f's_waitcnt vmcnt({win-1})'); self.vm = self.vm[len(self.vm) - (win - 1):] if win > 1 else []
    def stamp(self, k):
        if self.cfg.get('prof'):
            self.A(f's_memrealtime s[{SST+2*k}:{SST+1+2*k}]')
            self.A('s_waitcnt lgkmcnt(0)')

VL, VKQ, VN, VB, VE = 1, 2, 3, 4, 5
VM = [6, 7, 8, 9]
VTAG, VG16, VRA, VRR, VPUB, VT = 10, 11, 12, 13, 14, 15
VF = [16, 20]
VACC = [24, 28]
VD = 32
VS = 64
VX = 66
VRQ = 68
S_WS, S_MOD, S_K, S_V, S_WQ, S_WO, S_W1, S_W2, S_X, S_CC, S_OUT = 4, 8, 12, 16, 20, 24, 28, 32, 36, 40, 44
SW, SXC, SU, STAG = 84, 85, 86, 87
SK0, SK1 = 88, 89
SST = 48
NST = 14
ST0, ST1, ST2, ST3 = 90, 91, 92, 93
SMASK, SHI, SCNT, SPOLL, SEX = 94, 95, 96, 97, 98

def srd(g, d, ptr, size):
    g.A(f's_mov_b32 s{d}, s{ptr}\ns_mov_b32 s{d+1}, s{ptr+1}\ns_mov_b32 s{d+2}, {size:#x}\ns_mov_b32 s{d+3}, 0x20000')

def wload(g, name, dst, vaddr, srdn, soff, imm=0, win=0):
    g.window(win)
    so = '0'
    if soff:
        g.A(f's_mov_b32 s{ST0}, {soff:#x}'); so = f's{ST0}'
    o = f' offset:{imm}' if imm else ''
    g.A(f'buffer_load_dwordx4 v[{dst}:{dst+3}], v{vaddr}, s[{srdn}:{srdn+3}], {so} offen{o} nt')
    g.issued(name)

def rb(g, a):
    g.A(f'v_cvt_pk_bf16_f32 v{a}, v{a}, v{a}\nv_and_b32 v{a}, s{SHI}, v{a}')
def rb_pair(g, a, b, t):
    g.A(f'v_cvt_pk_bf16_f32 v{t}, v{a}, v{b}\nv_lshlrev_b32 v{a}, 16, v{t}\nv_and_b32 v{b}, s{SHI}, v{t}')
def rb_list(g, regs, temps):
    for k in range(0, len(regs), 2): rb_pair(g, regs[k], regs[k+1], temps[(k // 2) % len(temps)])

def rscatter(g, quads):
    for X in quads: g.A(f'v_permlane32_swap_b32 v{X}, v{X+2}\nv_permlane32_swap_b32 v{X+1}, v{X+3}')
    for X in quads: g.A(f'v_add_f32 v{X}, v{X}, v{X+2}\nv_add_f32 v{X+1}, v{X+1}, v{X+3}')
    for X in quads: g.A(f'v_permlane16_swap_b32 v{X}, v{X+1}')
    for X in quads: g.A(f'v_add_f32 v{X}, v{X}, v{X+1}')
    for X in quads: g.A(f'v_add_f32_dpp v{X}, v{X}, v{X} row_ror:8 {DPPF}')

def allreduce_kq(g, regs, temps, op='add'):
    for sw in ['v_permlane16_swap_b32', 'v_permlane32_swap_b32']:
        for r, t in zip(regs, temps): g.A(f'v_mov_b32 v{t}, v{r}')
        for r, t in zip(regs, temps): g.A(f'{sw} v{r}, v{t}')
        for r, t in zip(regs, temps): g.A(f'v_{op}_f32 v{r}, v{r}, v{t}')

def gemv(g, xdup, wregs, accs):
    n = 4 * len(xdup)
    def build(i):
        f = VF[i & 1]; s = i & 3
        for r in range(4): g.A(f'v_and_b32_dpp v{f+r}, v{xdup[i >> 2]}, v{VM[r]} quad_perm:[{s},{s},{s},{s}] {DPPF}')
    build(0)
    for i in range(n):
        if i + 1 < n: build(i + 1)
        f = VF[i & 1]
        for c, acc in enumerate(accs):
            cin = '0' if i == 0 else f'v[{acc}:{acc+3}]'
            w = wregs[i][c]
            g.A(f'v_mfma_f32_16x16x32_bf16 v[{acc}:{acc+3}], v[{f}:{f+3}], v[{w}:{w+3}], {cin}')

def slot_off(slot): return (slot - 1) * RBUF

def red_write(g, accs, slot, va=VRA):
    for c, acc in enumerate(accs):
        if slot == 0: g.A(f'v_add_u32 v{VT}, {L_RED}, v{va}\nds_write_b128 v{VT}, v[{acc}:{acc+3}]')
        else: g.A(f'ds_write_b128 v{va}, v[{acc}:{acc+3}] offset:{slot_off(slot + c)}')

def publish(g, slot, nacc, sbase, stride):
    skip = g.lab('pub')
    if nacc == 1: g.A(f's_cmp_ge_u32 s{SW}, 4\ns_cbranch_scc1 {skip}')
    d = VD
    if slot == 0:
        g.A(f'v_add_u32 v{VT}, {L_RED}, v{VRR}'); a = VT; o = 0
    else:
        a = VRR; o = slot_off(slot)
    g.A(f'ds_read_b128 v[{d}:{d+3}], v{a} offset:{o}')
    g.A(f'ds_read_b128 v[{d+4}:{d+7}], v{a} offset:{o + 4*RSTR}')
    if nacc > 1:
        g.A(f's_lshr_b32 s{ST0}, s{SW}, 2\ns_mul_i32 s{ST0}, s{ST0}, {stride}\ns_add_u32 s{sbase}, s{sbase}, s{ST0}')
    g.A('s_waitcnt lgkmcnt(0)')
    for i in range(4): g.A(f'v_add_f32 v{d+i}, v{d+i}, v{d+4+i}')
    for mode in ['quad_perm:[1,0,3,2]', 'quad_perm:[2,3,0,1]']:
        for i in range(4): g.A(f'v_add_f32_dpp v{d+i}, v{d+i}, v{d+i} {mode} {DPPF}')
    g.A(f'v_and_or_b32 v{d}, v{d}, s{SMASK}, v{VTAG}\nv_and_or_b32 v{d+3}, v{d+3}, s{SMASK}, v{VTAG}')
    g.A(f's_mov_b32 exec_lo, 0x11111111\ns_mov_b32 exec_hi, 0x11111111')
    g.A(f'buffer_store_dwordx4 v[{d}:{d+3}], v{VPUB}, s[{S_WS}:{S_WS+3}], s{sbase} offen sc1')
    g.A('s_mov_b64 exec, -1\ns_nop 0')
    g.A(f'{skip}:')

def gloads(g, loads):
    for dst, n, va, so, imm in loads:
        sfx = {4: 'x4', 2: 'x2'}[n]
        o = f' offset:{imm}' if imm else ''
        g.A(f'buffer_load_dword{sfx} v[{dst}:{dst+n-1}], v{va}, s[{S_WS}:{S_WS+3}], {"s%d" % so if so is not None else "0"} offen{o} sc1')

def poll(g, loads, sleep=None):
    top = g.lab('poll'); done = g.lab('ok')
    if sleep is None: sleep = g.cfg.get('sleep', 1)
    g.A(f's_mov_b32 s{SCNT}, 0')
    g.A(f'{top}:')
    gloads(g, loads)
    g.A(f's_add_u32 s{SCNT}, s{SCNT}, 1')
    first = True
    for k, (dst, n, va, so, imm) in enumerate(loads):
        g.A(f's_waitcnt vmcnt({len(loads)-1-k})')
        for r in (dst, dst + n - 1):
            if first: g.A(f'v_xor_b32 v{VT}, v{r}, v{VTAG}'); first = False
            else: g.A(f'v_bitop3_b32 v{VT}, v{VT}, v{r}, v{VTAG} bitop3:0xf6')
    g.A(f'v_and_b32 v{VT}, 0xff, v{VT}\nv_cmp_ne_u32 vcc, 0, v{VT}')
    g.A(f's_cbranch_vccz {done}')
    if sleep: g.A(f's_sleep {sleep}')
    g.A(f's_cmp_lt_u32 s{SCNT}, {SPIN_MAX}\ns_cbranch_scc1 {top}')
    g.A(f'{done}:')
    if g.cfg.get('prof'): g.A(f's_lshl_b32 s{SPOLL}, s{SPOLL}, 6\ns_min_u32 s{SCNT}, s{SCNT}, 63\ns_or_b32 s{SPOLL}, s{SPOLL}, s{SCNT}')
    g.vm = []

def barrier(g): g.A('s_waitcnt lgkmcnt(0)\ns_barrier')

def silu(g, src):
    t = VD
    g.A(f'v_lshlrev_b32 v{t}, 16, v{src}\nv_mul_f32 v{t+1}, {NLOG2E:#x}, v{t}\nv_exp_f32 v{t+1}, v{t+1}\nv_add_f32 v{t+1}, 1.0, v{t+1}')
    g.A(f'v_rcp_f32 v{t+2}, v{t+1}\nv_mul_f32 v{t+3}, v{t}, v{t+2}')
    g.A(f'v_cvt_pk_bf16_f32 v{VS}, v{t+3}, v{t+3}')

def ln_scalars(g, s1, s2, t):
    g.A(f'v_mul_f32 v{s1}, 0x3a800000, v{s1}\nv_mul_f32 v{s2}, 0x3a800000, v{s2}')
    g.A(f'v_fma_f32 v{s2}, -v{s1}, v{s1}, v{s2}\nv_max_f32 v{s2}, 0, v{s2}')
    rb_pair(g, s1, s2, t)
    g.A(f'v_add_f32 v{s2}, 0x3727c5ac, v{s2}')
    rb(g, s2)
    g.A(f'v_sqrt_f32 v{s2}, v{s2}')
    rb(g, s2)

def pair_reduce_s3(g, X, T):
    g.A(f'v_permlane32_swap_b32 v{X}, v{X+1}\nv_add_f32 v{X}, v{X}, v{X+1}\nv_mov_b32 v{T}, v{X}\nv_permlane16_swap_b32 v{X}, v{T}\nv_add_f32 v{X}, v{X}, v{T}')
    g.A(f'v_add_f32_dpp v{X}, v{X}, v{X} row_ror:8 {DPPF}')

def tile_addr(g, va, srow, stride, scol):
    g.A(f's_mul_i32 s{srow}, s{srow}, {stride}\ns_add_u32 s{srow}, s{srow}, s{scol}')
    g.A(f'v_mul_u32_u24 v{va}, {stride}, v{VKQ}\nv_lshl_add_u32 v{va}, v{VN}, 4, v{va}\nv_add_u32 v{va}, s{srow}, v{va}')

def p1_addr(g, va, cg_base):
    g.A(f's_and_b32 s{ST2}, s{SU}, 7\ns_lshl_b32 s{ST2}, s{ST2}, 7\ns_lshl_b32 s{ST1}, s{SW}, 4\ns_add_u32 s{ST2}, s{ST2}, s{ST1}')
    g.A(f's_and_b32 s{ST1}, s{SU}, 8\ns_add_u32 s{ST1}, s{ST1}, s{SXC}\ns_add_u32 s{ST1}, s{ST1}, {cg_base}\ns_lshl_b32 s{ST1}, s{ST1}, 8')
    tile_addr(g, va, ST2, 12288, ST1)

def p1_pub_base(g, s, cg_base):
    g.A(f's_and_b32 s{s}, s{SU}, 8\ns_add_u32 s{s}, s{s}, s{SXC}\ns_add_u32 s{s}, s{s}, {cg_base}\ns_lshl_b32 s{s}, s{s}, 3')
    g.A(f's_and_b32 s{ST0}, s{SU}, 7\ns_add_u32 s{s}, s{s}, s{ST0}\ns_lshl_b32 s{s}, s{s}, 10\ns_add_u32 s{s}, s{s}, {MODP:#x}')

def p1_stage(g, wreg, slot, cg_base):
    gemv(g, [VS], [[wreg + 4 * i] for i in range(4)], [VACC[0]])
    p1_pub_base(g, ST2, cg_base)
    red_write(g, [VACC[0]], slot)
    barrier(g)
    publish(g, slot, 1, ST2, 0)

def finish(g):
    if g.cfg.get('prof'):
        g.A(f's_lshl_b32 s{ST0}, s2, 3\ns_add_u32 s{ST0}, s{ST0}, s{SW}\ns_lshl_b32 s{ST0}, s{ST0}, 6\ns_add_u32 s{ST0}, s{ST0}, {PROF:#x}')
        g.A(f's_getreg_b32 s{ST1}, hwreg(HW_REG_XCC_ID)')
        g.A(f'v_mov_b32 v{VT}, 0\ns_mov_b64 exec, 1')
        for k in range(NST):
            g.A(f'v_mov_b32 v{VD}, s{SST+2*k}\nbuffer_store_dword v{VD}, v{VT}, s[{S_WS}:{S_WS+3}], s{ST0} offen offset:{4*k}')
        g.A(f'v_mov_b32 v{VD}, s{SPOLL}\nbuffer_store_dword v{VD}, v{VT}, s[{S_WS}:{S_WS+3}], s{ST0} offen offset:56')
        g.A(f'v_mov_b32 v{VD}, s{ST1}\nbuffer_store_dword v{VD}, v{VT}, s[{S_WS}:{S_WS+3}], s{ST0} offen offset:60')
    g.A('s_endpgm')

def srdc(g, d, size):
    g.A(f's_mov_b32 s{d+2}, {size:#x}\ns_mov_b32 s{d+3}, 0x20000')

def prologue(g):
    cfg = g.cfg
    if cfg.get('prof'): g.A(f's_memrealtime s[{SST}:{SST+1}]')
    g.A(f's_load_dwordx2 s[{S_MOD}:{S_MOD+1}], s[0:1], 72\ns_load_dwordx2 s[{S_K}:{S_K+1}], s[0:1], 8\ns_load_dwordx2 s[{S_CC}:{S_CC+1}], s[0:1], 64')
    g.A(f's_load_dwordx2 s[{S_WS}:{S_WS+1}], s[0:1], 96\ns_load_dwordx2 s[{S_V}:{S_V+1}], s[0:1], 16\ns_load_dwordx2 s[{S_WQ}:{S_WQ+1}], s[0:1], 24\ns_load_dwordx2 s[{S_X}:{S_X+1}], s[0:1], 0')
    g.A('s_cmp_ge_u32 s2, 256\ns_cbranch_scc1 L_exit')
    if cfg.get('code_pf', 1):
        g.A(f's_getpc_b64 s[{SEX}:{SEX+1}]')
        g.A('L_pc:')
        g.A(f'v_min_u32 v{VT}, (L_exit-L_pc)/64, v0\nv_lshlrev_b32 v{VT}, 6, v{VT}')
        g.A(f'global_load_dword v250, v{VT}, s[{SEX}:{SEX+1}]'); g.issued('code')
    g.A(f'v_lshrrev_b32 v{VT}, 6, v0\nv_and_b32 v{VL}, 63, v0')
    g.A(f'v_readfirstlane_b32 s{SW}, v{VT}')
    g.A(f'v_lshrrev_b32 v{VKQ}, 4, v{VL}\nv_and_b32 v{VN}, 15, v{VL}')
    g.A(f's_and_b32 s{SXC}, s2, 7\ns_bfe_u32 s{SU}, s2, 0x40003')

def late_consts(g):
    cfg = g.cfg
    g.A(f's_load_dword s{STAG}, s[{S_WS}:{S_WS+1}], 0')
    g.A(f's_load_dwordx2 s[{S_WO}:{S_WO+1}], s[0:1], 32\ns_load_dwordx2 s[{S_W1}:{S_W1+1}], s[0:1], 48\ns_load_dwordx2 s[{S_W2}:{S_W2+1}], s[0:1], 56\ns_load_dwordx2 s[{S_OUT}:{S_OUT+1}], s[0:1], 80')
    g.A(f's_mov_b32 s{SMASK}, 0xffffff00\ns_mov_b32 s{SHI}, 0xffff0000\ns_mov_b32 s{SPOLL}, 0')
    srdc(g, S_WS, WS_BYTES); srdc(g, S_X, 4096); srdc(g, S_CC, 4096); srdc(g, S_MOD, 1024 * 6144 * 2)
    srdc(g, S_WO, 4096 * 1024 * 2); srdc(g, S_W1, 1024 * 3584 * 2); srdc(g, S_W2, 3584 * 1024 * 2); srdc(g, S_OUT, 4096)

def ve_const(g):
    g.A(f'v_bfe_u32 v{VB}, v{VL}, 2, 1\nv_and_b32 v{VE}, 3, v{VL}\nv_lshl_add_u32 v{VE}, v{VE}, 2, v{VKQ}\nv_lshl_add_u32 v{VE}, v{VB}, 10, v{VE}\nv_lshlrev_b32 v{VE}, 1, v{VE}')

def zero_stamps(g):
    if g.cfg.get('prof'):
        for k in range(1, NST): g.A(f's_mov_b64 s[{SST+2*k}:{SST+1+2*k}], 0')

def lane_consts(g):
    g.A(f'v_and_b32 v{VT}, 1, v{VL}\nv_lshlrev_b32 v{VT}, 4, v{VT}\nv_mov_b32 v{VD}, 0xffff\nv_lshlrev_b32 v{VT}, v{VT}, v{VD}')
    g.A(f'v_bfe_u32 v{VD}, v{VL}, 1, 1\nv_bfe_u32 v{VD+1}, v{VL}, 3, 1\nv_lshl_add_u32 v{VD}, v{VD+1}, 1, v{VD}')
    for r in range(4):
        g.A(f'v_cmp_eq_u32 vcc, {r}, v{VD}\nv_cndmask_b32 v{VM[r]}, 0, v{VT}, vcc')
    g.A(f'v_lshrrev_b32 v{VG16}, 3, v{VL}\nv_lshlrev_b32 v{VG16}, 10, v{VG16}\nv_and_b32 v{VT}, 7, v{VL}\nv_lshl_add_u32 v{VG16}, v{VT}, 4, v{VG16}')
    g.A(f's_lshl_b32 s{ST0}, s{SW}, 7\nv_add_u32 v{VG16}, s{ST0}, v{VG16}')
    g.A(f'v_lshrrev_b32 v{VD}, 1, v{VKQ}\nv_and_b32 v{VD+1}, 1, v{VKQ}\ns_mul_i32 s{ST0}, s{SW}, {RSTR}')
    g.A(f'v_lshrrev_b32 v{VRA}, 1, v{VN}\nv_lshl_add_u32 v{VRA}, v{VRA}, 3, v{VD}\nv_lshl_add_u32 v{VRA}, v{VD+1}, 2, v{VRA}\nv_and_b32 v{VT}, 1, v{VN}\nv_lshl_add_u32 v{VRA}, v{VT}, 1, v{VRA}')
    g.A(f'v_lshl_add_u32 v{VRA}, v{VRA}, 4, s{ST0}')
    g.A(f'v_lshl_add_u32 v{VRQ}, v{VN}, 1, v{VD}\nv_lshl_add_u32 v{VRQ}, v{VD+1}, 5, v{VRQ}\nv_lshl_add_u32 v{VRQ}, v{VRQ}, 4, s{ST0}')
    g.A(f'v_lshrrev_b32 v{VPUB}, 2, v{VL}\nv_lshlrev_b32 v{VPUB}, 4, v{VPUB}\ns_and_b32 s{ST0}, s{SW}, 3\ns_lshl_b32 s{ST0}, s{ST0}, 8\nv_add_u32 v{VPUB}, s{ST0}, v{VPUB}')
    g.A(f'v_and_b32 v{VT}, 3, v{VL}\nv_mul_u32_u24 v{VT}, {RSTR}, v{VT}\ns_lshr_b32 s{ST0}, s{SW}, 2\ns_mul_i32 s{ST0}, s{ST0}, {RBUF}\nv_add3_u32 v{VRR}, v{VT}, v{VPUB}, s{ST0}')
    g.A('s_waitcnt lgkmcnt(0)')
    g.A(f's_add_u32 s{STAG}, s{STAG}, 1\ns_and_b32 s{ST0}, s{STAG}, 0xff\nv_mov_b32 v{VTAG}, s{ST0}')

def load_c(g, vc):
    g.A(f's_lshl_b32 s{ST1}, s{SW}, 5\ns_and_b32 s{ST0}, s{SU}, 7\ns_lshl_b32 s{ST0}, s{ST0}, 8\ns_add_u32 s{ST0}, s{ST0}, s{ST1}')
    g.A(f'buffer_load_ushort v{vc}, v{VE}, s[{S_CC}:{S_CC+3}], s{ST0} offen'); g.issued('c')
def load_xr(g, vxr):
    g.A(f's_lshl_b32 s{ST1}, s{SW}, 5\ns_lshl_b32 s{ST0}, s{SXC}, 8\ns_add_u32 s{ST0}, s{ST0}, s{ST1}')
    g.A(f'buffer_load_ushort v{vxr}, v{VE}, s[{S_X}:{S_X+3}], s{ST0} offen'); g.issued('xr')

def prog_A(g, head):
    cfg = g.cfg
    W1A, WQ, WO, W1B, W2 = 80, 96, 128, 160, 176
    VA1, VAQ, VAO, VA1B, VA2 = 210, 211, 212, 213, 214
    VC, VXR, VXF, VLN = 216, 217, 218, 220
    VGO, VGM, VGH, VGS = 222, 223, 224, 225
    if head:
        p1_addr(g, VA1, 0)
        srdc(g, S_MOD, 1024 * 6144 * 2); srdc(g, S_CC, 4096)
        ve_const(g)
        g.A('s_waitcnt lgkmcnt(0)')
        load_c(g, VC)
        for i in range(4): wload(g, 'p1a', W1A + 4 * i, VA1, S_MOD, 4 * i * 12288)
        g.A('s_branch L_progA')
        return
    zero_stamps(g); g.stamp(12)
    late_consts(g)
    srdc(g, S_WQ, 1024 * 4096 * 2)
    load_xr(g, VXR)
    g.A(f'v_lshrrev_b32 v{VT}, 5, v{VL}\nv_lshlrev_b32 v{VT}, 11, v{VT}\nv_and_b32 v{VD}, 31, v{VL}\nv_lshl_add_u32 v{VT}, v{VD}, 3, v{VT}\ns_lshl_b32 s{ST0}, s{SW}, 8')
    g.A(f'buffer_load_dwordx2 v[{VXF}:{VXF+1}], v{VT}, s[{S_X}:{S_X+3}], s{ST0} offen'); g.issued('xf')
    g.A(f's_lshl_b32 s{ST2}, s{SXC}, 7\ns_lshl_b32 s{ST1}, s{SW}, 4\ns_add_u32 s{ST2}, s{ST2}, s{ST1}\ns_lshl_b32 s{ST1}, s{SU}, 9')
    tile_addr(g, VAQ, ST2, 8192, ST1)
    lane_consts(g)
    g.wait('c')
    silu(g, VC)
    g.stamp(13)
    wq_l = [lambda win, i=i, c=c: wload(g, 'wq', WQ + 8 * i + 4 * c, VAQ, S_WQ, 4 * i * 8192, c * 256, win) for i in range(4) for c in range(2)]
    wo_l = [lambda win, ih=ih, s=s: wload(g, 'wo', WO + 16 * ih + 4 * s, VAO, S_WO, (128 * s + 4 * ih) * 2048, 0, win) for ih in range(2) for s in range(4)]
    p1b_l = [lambda win, i=i: wload(g, 'p1b', W1B + 4 * i, VA1B, S_MOD, 4 * i * 12288, 0, win) for i in range(4)]
    w2_l = [lambda win, i=i: wload(g, 'w2', W2 + 4 * i, VA2, S_W2, 4 * i * 2048, 0, win) for i in range(8)]
    seq = wq_l + (p1b_l + wo_l if cfg.get('A_p1b_first', 0) else wo_l + p1b_l) + w2_l
    pos = [0]
    def emit(upto, win):
        while pos[0] < upto: seq[pos[0]](win); pos[0] += 1
    emit(cfg.get('A_e0', 4), cfg.get('A_w0', 6))
    g.wait('xf'); g.stamp(1)
    gemv(g, [VS], [[W1A + 4 * i] for i in range(4)], [VACC[0]])
    s1, s2 = VD, VD + 1
    g.A(f's_mov_b32 s{ST0}, 0x3f803f80\nv_dot2_f32_bf16 v{s1}, v{VXF}, s{ST0}, 0\nv_dot2_f32_bf16 v{s2}, v{VXF}, v{VXF}, 0')
    g.A(f'v_dot2_f32_bf16 v{s1}, v{VXF+1}, s{ST0}, v{s1}\nv_dot2_f32_bf16 v{s2}, v{VXF+1}, v{VXF+1}, v{s2}')
    p1_pub_base(g, ST2, 0)
    red_write(g, [VACC[0]], 0)
    for mode in ['quad_perm:[1,0,3,2]', 'quad_perm:[2,3,0,1]', 'row_half_mirror', 'row_mirror']:
        for r in (s1, s2): g.A(f'v_add_f32_dpp v{r}, v{r}, v{r} {mode} {DPPF}')
    g.A(f's_lshl_b32 s{ST0}, s{SW}, 5\ns_add_u32 s{ST0}, s{ST0}, {L_Q}\nv_lshl_add_u32 v{VT}, v{VKQ}, 3, s{ST0}\nds_write_b64 v{VT}, v[{s1}:{s2}]')
    barrier(g)
    publish(g, 0, 1, ST2, 0); g.stamp(2)
    emit(8, cfg.get('A_w1', 4))
    g.A(f's_lshr_b32 s{ST2}, s{SU}, 2\ns_lshl_b32 s{ST2}, s{ST2}, 10\ns_and_b32 s{ST1}, s{SW}, 1\ns_lshl_b32 s{ST1}, s{ST1}, 9\ns_add_u32 s{ST2}, s{ST2}, s{ST1}')
    g.A(f's_and_b32 s{ST1}, s{SU}, 3\ns_lshl_b32 s{ST1}, s{ST1}, 5\ns_add_u32 s{ST2}, s{ST2}, s{ST1}\ns_lshr_b32 s{ST1}, s{SW}, 1\ns_lshl_b32 s{ST1}, s{ST1}, 3\ns_add_u32 s{ST2}, s{ST2}, s{ST1}\ns_lshl_b32 s{ST1}, s{SXC}, 8')
    tile_addr(g, VAO, ST2, 2048, ST1)
    g.A(f's_mul_i32 s{ST2}, s{SU}, 224\ns_min_u32 s{ST1}, s{SW}, 6\ns_lshl_b32 s{ST1}, s{ST1}, 5\ns_add_u32 s{ST2}, s{ST2}, s{ST1}\ns_lshl_b32 s{ST1}, s{SXC}, 8')
    tile_addr(g, VA2, ST2, 2048, ST1)
    p1_addr(g, VA1B, 16)
    g.A(f'v_lshrrev_b32 v{VT}, 3, v{VL}\nv_lshlrev_b32 v{VT}, 5, v{VT}\nv_lshl_add_u32 v{VT}, v{VB}, 4, v{VT}\nds_read_b128 v[{VD}:{VD+3}], v{VT} offset:0'.replace('offset:0', '').replace(f'ds_read_b128', f'v_add_u32 v{VT}, {L_Q}, v{VT}\nds_read_b128'))
    g.A(f's_waitcnt lgkmcnt(0)\nv_add_f32 v{VD}, v{VD}, v{VD+2}\nv_add_f32 v{VD+1}, v{VD+1}, v{VD+3}')
    pair_reduce_s3(g, VD, VD + 2)
    g.A(f'v_mov_b32 v{VD+1}, v{VD}\nv_permlane32_swap_b32 v{VD}, v{VD+1}')
    ln_scalars(g, s1, s2, VD + 2)
    g.A(f'v_lshlrev_b32 v{VLN}, 16, v{VXR}\nv_sub_f32 v{VLN}, v{VLN}, v{s1}')
    rb(g, VLN)
    g.A(f'v_rcp_f32 v{VD+4}, v{s2}\nv_mul_f32 v{VD+5}, v{VLN}, v{VD+4}\nv_fma_f32 v{VD+6}, -v{VD+5}, v{s2}, v{VLN}\nv_fma_f32 v{VLN}, v{VD+6}, v{VD+4}, v{VD+5}')
    rb(g, VLN)
    g.A(f's_lshr_b32 s{ST1}, s{SU}, 2\ns_lshl_b32 s{ST2}, s{ST1}, 17\ns_and_b32 s{ST0}, s{SU}, 3\ns_lshl_b32 s{ST0}, s{ST0}, 11\ns_add_u32 s{ST2}, s{ST2}, s{ST0}')
    g.A(f's_lshr_b32 s{ST0}, s{SW}, 1\ns_lshl_b32 s{ST0}, s{ST0}, 9\ns_add_u32 s{ST2}, s{ST2}, s{ST0}\ns_and_b32 s{ST0}, s{SW}, 1\ns_lshl_b32 s{ST3}, s{ST0}, 7\ns_add_u32 s{ST2}, s{ST2}, s{ST3}\ns_add_u32 s{ST2}, s{ST2}, {OP:#x}')
    g.A(f'v_lshrrev_b32 v{VD}, 3, v{VL}\nv_and_b32 v{VD+1}, 7, v{VL}')
    g.A(f'v_lshlrev_b32 v{VGO}, 13, v{VD}\nv_lshl_add_u32 v{VGO}, v{VD+1}, 4, v{VGO}\nv_add_u32 v{VGO}, s{ST2}, v{VGO}')
    g.A(f's_lshl_b32 s{ST2}, s{ST1}, 11\ns_lshl_b32 s{ST3}, s{ST0}, 6\ns_add_u32 s{ST2}, s{ST2}, s{ST3}\ns_add_u32 s{ST2}, s{ST2}, {MLP:#x}')
    g.A(f'v_lshlrev_b32 v{VGM}, 7, v{VD}\nv_lshl_add_u32 v{VGM}, v{VD+1}, 3, v{VGM}\nv_add_u32 v{VGM}, s{ST2}, v{VGM}')
    g.A(f's_mul_i32 s{ST0}, s{SU}, 224\ns_min_u32 s{ST1}, s{SW}, 6\ns_lshl_b32 s{ST1}, s{ST1}, 5\ns_add_u32 s{ST0}, s{ST0}, s{ST1}\ns_lshr_b32 s{ST1}, s{ST0}, 7\ns_and_b32 s{ST0}, s{ST0}, 127')
    g.A(f's_lshl_b32 s{ST2}, s{ST1}, 13\ns_lshl_b32 s{ST0}, s{ST0}, 3\ns_add_u32 s{ST2}, s{ST2}, s{ST0}\ns_add_u32 s{ST2}, s{ST2}, {HIDP:#x}')
    g.A(f'v_lshlrev_b32 v{VGH}, 10, v{VD}\nv_lshl_add_u32 v{VGH}, v{VD+1}, 4, v{VGH}\nv_add_u32 v{VGH}, s{ST2}, v{VGH}')
    g.A(f's_lshr_b32 s{ST1}, s{ST1}, 1\ns_lshl_b32 s{ST1}, s{ST1}, 7\ns_add_u32 s{ST1}, s{ST1}, {STP:#x}')
    g.A(f'v_lshlrev_b32 v{VGS}, 11, v{VD}\nv_lshl_add_u32 v{VGS}, v{VB}, 3, v{VGS}\nv_add_u32 v{VGS}, s{ST1}, v{VGS}')
    emit(cfg.get('A_e1', 8), cfg.get('A_w1', 4))
    g.A(f's_lshl_b32 s{ST2}, s{SXC}, 13\ns_add_u32 s{ST2}, s{ST2}, {MODP:#x}\ns_add_u32 s{ST3}, s{ST2}, 0x10000')
    sa, ca = VD, VD + 4
    poll(g, [(sa, 4, VG16, ST2, 0), (ca, 4, VG16, ST3, 0)]); g.stamp(3)
    emit(cfg.get('A_e2', 10), 0)
    rscatter(g, [sa, ca])
    rb_pair(g, sa, ca, VD + 1)
    g.A(f'v_add_f32 v{ca}, 1.0, v{ca}'); rb(g, ca)
    g.A(f'v_mul_f32 v{ca}, v{ca}, v{VLN}'); rb(g, ca)
    g.A(f'v_add_f32 v{ca}, v{ca}, v{sa}\nv_cvt_pk_bf16_f32 v{VX}, v{ca}, v{ca}')
    gemv(g, [VX], [[WQ + 8 * i, WQ + 8 * i + 4] for i in range(4)], VACC)
    g.A(f's_lshl_b32 s{ST2}, s{SU}, 4\ns_add_u32 s{ST2}, s{ST2}, s{SXC}\ns_lshl_b32 s{ST2}, s{ST2}, 10\ns_add_u32 s{ST2}, s{ST2}, {QP:#x}')
    red_write(g, VACC, 1, VRQ)
    barrier(g)
    publish(g, 1, 2, ST2, 8192); g.stamp(4)
    if cfg.get('A_p1b_first', 0):
        emit(cfg.get('A_e3a', 16), cfg.get('A_w2', 4))
    else:
        emit(cfg.get('A_e3', 20), cfg.get('A_w2', 4))
    g.wait('p1b')
    p1_stage(g, W1B, 3, 16); g.stamp(5)
    emit(cfg.get('A_e3', 20), cfg.get('A_w2', 4))
    g.A(f's_mov_b32 s{ST3}, 0x10000')
    O0, O1, ML = VD, VD + 8, VD + 16
    if cfg.get('probe3', 1):
        poll(g, [(ML, 2, VGM, None, 0), (ML + 2, 2, VGM, None, 1024)])
        poll(g, [(O0, 4, VGO, None, 0), (O0 + 4, 4, VGO, None, 256), (O1, 4, VGO, ST3, 0), (O1 + 4, 4, VGO, ST3, 256)]); g.stamp(6)
    else:
        poll(g, [(ML, 2, VGM, None, 0), (ML + 2, 2, VGM, None, 1024), (O0, 4, VGO, None, 0), (O0 + 4, 4, VGO, None, 256),
                 (O1, 4, VGO, ST3, 0), (O1 + 4, 4, VGO, ST3, 256)]); g.stamp(6)
    emit(cfg.get('A_e4', 22), 0)
    M = VD + 20
    g.A(f'v_max_f32 v{M}, v{ML}, v{ML+2}\nv_max_f32_dpp v{M}, v{M}, v{M} row_ror:8 {DPPF}')
    allreduce_kq(g, [M], [M + 1], 'max')
    g.A(f'v_sub_f32 v{ML}, v{ML}, v{M}\nv_sub_f32 v{ML+2}, v{ML+2}, v{M}\nv_exp_f32 v{ML}, v{ML}\nv_exp_f32 v{ML+2}, v{ML+2}')
    g.A(f'v_mul_f32 v{M}, v{ML}, v{ML+1}\nv_fmac_f32 v{M}, v{ML+2}, v{ML+3}')
    for i in range(8): g.A(f'v_mul_f32 v{O0+i}, v{O0+i}, v{ML}')
    g.A(f'v_add_f32_dpp v{M}, v{M}, v{M} row_ror:8 {DPPF}')
    for i in range(8): g.A(f'v_fmac_f32 v{O0+i}, v{O1+i}, v{ML+2}')
    allreduce_kq(g, [M], [M + 1])
    rscatter(g, [O0, O0 + 4])
    g.A(f'v_rcp_f32 v{M}, v{M}')
    g.A(f'v_mul_f32 v{O0}, v{O0}, v{M}\nv_mul_f32 v{O0+4}, v{O0+4}, v{M}')
    g.A(f'v_cvt_pk_bf16_f32 v{VX}, v{O0}, v{O0}\nv_cvt_pk_bf16_f32 v{VX+1}, v{O0+4}, v{O0+4}')
    gemv(g, [VX, VX + 1], [[WO + 4 * i] for i in range(8)], [VACC[0]])
    g.A(f's_lshl_b32 s{ST2}, s{SXC}, 4\ns_add_u32 s{ST2}, s{ST2}, s{SU}\ns_lshl_b32 s{ST2}, s{ST2}, 10\ns_add_u32 s{ST2}, s{ST2}, {ATP:#x}')
    red_write(g, [VACC[0]], 4)
    barrier(g)
    publish(g, 4, 1, ST2, 0); g.stamp(7)
    for r in range(4): g.A(f'v_mov_b32 v{VACC[0]+r}, 0')
    g.A(f's_cmp_eq_u32 s{SW}, 7\ns_cbranch_scc1 L_A_p6skip')
    emit(28, cfg.get('A_w3', 4))
    g.A(f's_mov_b32 s{ST2}, {HTERM:#x}\ns_mov_b32 s{ST3}, {2*HTERM:#x}')
    BV, CV, AV, SS = VD + 8, VD + 16, VD, VD + 24
    poll(g, [(BV, 4, VGH, ST2, 0), (BV + 4, 4, VGH, ST2, 128), (CV, 4, VGH, ST3, 0), (CV + 4, 4, VGH, ST3, 128)]); g.stamp(8)
    rscatter(g, [BV, BV + 4, CV, CV + 4])
    poll(g, [(SS, 2, VGS, None, 0), (AV, 4, VGH, None, 0), (AV + 4, 4, VGH, None, 128)]); g.stamp(9)
    pair_reduce_s3(g, SS, SS + 2)
    g.A(f'v_mov_b32 v{SS+1}, v{SS}\nv_permlane32_swap_b32 v{SS}, v{SS+1}')
    rscatter(g, [AV, AV + 4])
    ln_scalars(g, SS, SS + 1, SS + 2)
    g.A(f'v_rcp_f32 v{SS+1}, v{SS+1}')
    for i in (0, 4): g.A(f'v_fma_f32 v{AV+i}, -v{SS}, v{BV+i}, v{AV+i}')
    for i in (0, 4): g.A(f'v_fma_f32 v{AV+i}, v{AV+i}, v{SS+1}, v{CV+i}')
    for i in (0, 4): g.A(f'v_max_f32 v{AV+i}, 0, v{AV+i}')
    g.A(f'v_cvt_pk_bf16_f32 v{VX}, v{AV}, v{AV}\nv_cvt_pk_bf16_f32 v{VX+1}, v{AV+4}, v{AV+4}')
    gemv(g, [VX, VX + 1], [[W2 + 4 * i] for i in range(8)], [VACC[0]])
    g.A('L_A_p6skip:')
    g.A(f's_lshl_b32 s{ST2}, s{SXC}, 4\ns_add_u32 s{ST2}, s{ST2}, s{SU}\ns_lshl_b32 s{ST2}, s{ST2}, 10\ns_add_u32 s{ST2}, s{ST2}, {OUTP:#x}')
    red_write(g, [VACC[0]], 5)
    barrier(g)
    publish(g, 5, 1, ST2, 0); g.stamp(10)
    finish(g)

def prog_B(g, head):
    cfg = g.cfg
    KF, VFR, PF, W1B, W1 = 80, 112, 144, 176, 192
    VAK = [224, 225, 226, 227]; VAV = [228, 229]
    VA1B, VA5 = 230, 231
    VC, VXR = 232, 233
    VGA, VTD, VX2, VST, VSR = 234, 235, 236, 237, 238
    VQG, VQW, VQR, VVR, VMX, VMW, VPW, VPR, VOS = 240, 241, 242, 243, 244, 245, 246, 247, 248
    def dma(name, i, srdn, lbase, va, win):
        g.window(win)
        if i % 4 == 0:
            g.A(f's_lshl_b32 s{ST0}, s{SW}, 13\ns_add_u32 m0, s{ST0}, {lbase + (i//4)*4096}')
        o = f' offset:{(i%4)*1024}' if i % 4 else ''
        g.A(f'buffer_load_dwordx4 v{va}, s[{srdn}:{srdn+3}], s{SK0 if i < 4 else SK1} offen{o} nt lds'); g.issued(name)
    k_l = [lambda win, i=i: dma('k', i, S_K, L_K, VAK[i % 4], win) for i in range(8)]
    v_l = [lambda win, i=i: dma('v', i, S_V, L_V, VAV[i % 2], win) for i in range(8)]
    p1b_l = [lambda win, i=i: wload(g, 'p1b', W1B + 4 * i, VA1B, S_MOD, 4 * i * 12288, 0, win) for i in range(4)]
    w1_l = [lambda win, i=i, c=c: wload(g, 'w1', W1 + 8 * i + 4 * c, VA5, S_W1, 4 * i * 7168, c * 256, win) for i in range(4) for c in range(2)]
    seq = k_l + v_l + p1b_l + w1_l
    pos = [0]
    def emit(upto, win):
        while pos[0] < upto: seq[pos[0]](win); pos[0] += 1
    if head:
        g.A(f's_lshl_b32 s{SK0}, s{SXC}, 23\ns_lshl_b32 s{ST1}, s{SU}, 16\ns_add_u32 s{SK0}, s{SK0}, s{ST1}\ns_lshl_b32 s{ST1}, s{SW}, 13\ns_add_u32 s{SK0}, s{SK0}, s{ST1}\ns_add_u32 s{SK0}, s{SK0}, {28672*256:#x}')
        g.A(f's_add_u32 s{SK1}, s{SK0}, 4096')
        g.A(f'v_xor_b32 v{VT}, v{VN}, v{VKQ}\nv_lshlrev_b32 v{VT}, 4, v{VT}\nv_lshl_add_u32 v{VAK[0]}, v{VKQ}, 8, v{VT}')
        for i in range(1, 4): g.A(f'v_xor_b32 v{VAK[i]}, {64*i}, v{VAK[0]}')
        g.A(f'v_lshlrev_b32 v{VT}, 1, v{VKQ}\nv_xor_b32 v{VT}, v{VN}, v{VT}\nv_lshlrev_b32 v{VT}, 4, v{VT}\nv_lshl_add_u32 v{VAV[0]}, v{VKQ}, 8, v{VT}\nv_xor_b32 v{VAV[1]}, 128, v{VAV[0]}')
        srdc(g, S_K, 0x4000000); srdc(g, S_V, 0x4000000)
        g.A('s_waitcnt lgkmcnt(0)')
        emit(cfg.get('B_e0', 3), 0)
        emit(cfg.get('B_e1', 16), cfg.get('B_w0', 4))
        g.A('s_branch L_progB')
        return
    pos[0] = cfg.get('B_e1', 16)
    zero_stamps(g); g.stamp(12)
    late_consts(g)
    ve_const(g)
    load_c(g, VC)
    load_xr(g, VXR)
    lane_consts(g)
    p1_addr(g, VA1B, 32)
    g.A(f's_lshl_b32 s{ST2}, s{SXC}, 7\ns_lshl_b32 s{ST1}, s{SW}, 4\ns_add_u32 s{ST2}, s{ST2}, s{ST1}\ns_min_u32 s{ST1}, s{SU}, 13\ns_lshl_b32 s{ST1}, s{ST1}, 9')
    tile_addr(g, VA5, ST2, 7168, ST1)
    g.A(f's_and_b32 s{ST0}, s{SXC}, 3\ns_lshl_b32 s{ST0}, s{ST0}, 3\ns_add_u32 s{ST0}, s{ST0}, s{SW}\ns_lshl_b32 s{ST0}, s{ST0}, 13')
    g.A(f's_lshr_b32 s{ST1}, s{SXC}, 2\ns_lshl_b32 s{ST1}, s{ST1}, 9\ns_add_u32 s{ST0}, s{ST0}, s{ST1}\ns_add_u32 s{ST0}, s{ST0}, {QP:#x}')
    g.A(f'v_and_b32 v{VT}, 31, v{VL}\nv_lshrrev_b32 v{VQG}, 5, v{VL}\nv_lshlrev_b32 v{VQG}, 12, v{VQG}\nv_lshl_add_u32 v{VQG}, v{VT}, 4, v{VQG}\nv_add_u32 v{VQG}, s{ST0}, v{VQG}')
    g.A(f's_mul_i32 s{ST0}, s{SW}, 272\ns_add_u32 s{ST0}, s{ST0}, {L_Q}\nv_lshl_add_u32 v{VQW}, v{VT}, 3, s{ST0}\nv_lshrrev_b32 v{VT}, 5, v{VL}\nv_lshl_add_u32 v{VQW}, v{VT}, 2, v{VQW}')
    g.A(f'v_and_b32 v{VD}, 7, v{VL}\nv_mul_u32_u24 v{VQR}, 272, v{VD}\nv_lshl_add_u32 v{VQR}, v{VKQ}, 4, v{VQR}\nv_add_u32 v{VQR}, {L_Q}, v{VQR}')
    g.A(f'v_lshlrev_b32 v{VMX}, 5, v{VD}\nv_add_u32 v{VMX}, {L_MAX}, v{VMX}\ns_lshl_b32 s{ST0}, s{SW}, 2\nv_add_u32 v{VMW}, s{ST0}, v{VMX}')
    g.A(f'v_lshrrev_b32 v{VT}, 2, v{VL}')
    g.A(f'v_and_b32 v{VD+4}, 7, v{VT}\nv_lshlrev_b32 v{VD+4}, 1, v{VD+4}\nv_bfe_u32 v{VD+5}, v{VL}, 1, 1\ns_lshl_b32 s{ST0}, s{SW}, 1\nv_add_u32 v{VD+5}, s{ST0}, v{VD+5}\nv_xor_b32 v{VD+4}, v{VD+4}, v{VD+5}')
    g.A(f'v_lshlrev_b32 v{VVR}, 8, v{VT}\nv_lshl_add_u32 v{VVR}, v{VD+4}, 4, v{VVR}\nv_and_b32 v{VD+5}, 1, v{VL}\nv_lshl_add_u32 v{VVR}, v{VD+5}, 3, v{VVR}\nv_add_u32 v{VVR}, {L_V}, v{VVR}')
    g.A(f'v_lshlrev_b32 v{VPR}, 4, v{VL}\nv_add_u32 v{VPR}, {L_PX}, v{VPR}\ns_lshl_b32 s{ST0}, s{SW}, 10\nv_add_u32 v{VPW}, s{ST0}, v{VPR}')
    g.A(f'v_and_b32 v{VOS}, 3, v{VL}\nv_lshlrev_b32 v{VOS}, 4, v{VOS}\nv_lshl_add_u32 v{VOS}, v{VB}, 7, v{VOS}\nv_lshl_add_u32 v{VOS}, v{VKQ}, 8, v{VOS}')
    g.A(f's_lshl_b32 s{ST0}, s{SW}, 3\ns_add_u32 s{ST0}, s{ST0}, {L_STAT}\nv_lshl_add_u32 v{VST}, v{VB}, 6, s{ST0}\nv_lshrrev_b32 v{VT}, 5, v{VL}\nv_lshl_add_u32 v{VST}, v{VT}, 2, v{VST}')
    g.A(f'v_and_b32 v{VSR}, 0x38, v{VL}\nv_lshl_add_u32 v{VSR}, v{VB}, 6, v{VSR}\nv_add_u32 v{VSR}, {L_STAT}, v{VSR}')
    emit(cfg.get('B_e2', 16), cfg.get('B_w1', 4))
    g.wait('k'); g.stamp(1)
    a0 = VD
    g.A(f'v_xor_b32 v{VT}, v{VN}, v{VKQ}\nv_lshlrev_b32 v{VT}, 4, v{VT}\nv_lshl_add_u32 v{a0}, v{VN}, 8, v{VT}\ns_lshl_b32 s{ST0}, s{SW}, 13\nv_add_u32 v{a0}, s{ST0}, v{a0}')
    for i in range(1, 4): g.A(f'v_xor_b32 v{a0+i}, {64*i}, v{a0}')
    for t in range(2):
        for i in range(4):
            r = KF + 16 * t + 4 * i
            g.A(f'ds_read_b128 v[{r}:{r+3}], v{a0+i} offset:{L_K + t*4096}')
    g.wait('xr'); g.stamp(11)
    silu(g, VC)
    g.A(f'v_lshlrev_b32 v{VX2}, 16, v{VXR}')
    poll(g, [(VD + 4 * t, 4, VQG, None, t * 1024) for t in range(4)]); g.stamp(2)
    emit(cfg.get('B_e3', 18), 0)
    for i in range(4): g.A(f'v_add_f32 v{VD+i}, v{VD+i}, v{VD+4+i}\nv_add_f32 v{VD+8+i}, v{VD+8+i}, v{VD+12+i}')
    for i in range(4): g.A(f'v_add_f32 v{VD+i}, v{VD+i}, v{VD+8+i}')
    g.A(f'v_permlane32_swap_b32 v{VD}, v{VD+2}\nv_permlane32_swap_b32 v{VD+1}, v{VD+3}\nv_add_f32 v{VD}, v{VD}, v{VD+2}\nv_add_f32 v{VD+1}, v{VD+1}, v{VD+3}')
    g.A(f'v_cvt_pk_bf16_f32 v{VD}, v{VD}, v{VD+1}\nds_write_b32 v{VQW}, v{VD}')
    barrier(g)
    QF = VD
    for i in range(4): g.A(f'ds_read_b128 v[{QF+4*i}:{QF+4*i+3}], v{VQR} offset:{64*i}')
    nearly = 8
    trs = [(s, t) for s in range(8) for t in range(2)]
    for s, t in trs[:nearly]:
        r = VFR + 4 * s + 2 * t
        g.A(f'ds_read_b64_tr_b16 v[{r}:{r+1}], v{VVR} offset:{s*8192 + t*4096}')
    S = VD + 16
    for i in range(4):
        g.A(f's_waitcnt lgkmcnt({nearly + 3 - i})')
        for t in range(2):
            acc = S + 4 * t; k = KF + 16 * t + 4 * i
            cin = '0' if i == 0 else f'v[{acc}:{acc+3}]'
            g.A(f'v_mfma_f32_16x16x32_bf16 v[{acc}:{acc+3}], v[{k}:{k+3}], v[{QF+4*i}:{QF+4*i+3}], {cin}')
    g.A('s_waitcnt lgkmcnt(6)')
    for s, t in trs[nearly:]:
        r = VFR + 4 * s + 2 * t
        g.A(f'ds_read_b64_tr_b16 v[{r}:{r+1}], v{VVR} offset:{s*8192 + t*4096}')
    sr = [S + i for i in range(8)]
    tm = [VD + 24, VD + 25, VD + 26, VD + 27]
    rb_list(g, sr, tm)
    for r in sr: g.A(f'v_mul_f32 v{r}, {SCALE:#x}, v{r}')
    rb_list(g, sr, tm)
    m = VD + 28
    g.A(f'v_max3_f32 v{m}, v{S}, v{S+1}, v{S+2}\nv_max3_f32 v{m+1}, v{S+3}, v{S+4}, v{S+5}\nv_max3_f32 v{m}, v{m}, v{S+6}, v{S+7}\nv_max_f32 v{m}, v{m}, v{m+1}')
    allreduce_kq(g, [m], [m + 1], 'max')
    g.A(f'ds_write_b32 v{VMW}, v{m}')
    barrier(g)
    g.A(f'ds_read_b128 v[{VD}:{VD+3}], v{VMX}\nds_read_b128 v[{VD+4}:{VD+7}], v{VMX} offset:16\ns_mov_b32 s{ST0}, {LOG2E:#x}\ns_waitcnt lgkmcnt(0)')
    g.A(f'v_max3_f32 v{m}, v{VD}, v{VD+1}, v{VD+2}\nv_max3_f32 v{m+1}, v{VD+3}, v{VD+4}, v{VD+5}\nv_max3_f32 v{m}, v{m}, v{VD+6}, v{VD+7}\nv_max_f32 v{m}, v{m}, v{m+1}')
    g.A(f'v_mul_f32 v{m}, s{ST0}, v{m}\nv_and_or_b32 v{m}, v{m}, s{SMASK}, v{VTAG}')
    for r in sr: g.A(f'v_fma_f32 v{r}, v{r}, s{ST0}, -v{m}')
    for r in sr: g.A(f'v_exp_f32 v{r}, v{r}')
    for i in range(4): g.A(f'v_cvt_pk_bf16_f32 v{tm[i]}, v{S+2*i}, v{S+2*i+1}')
    g.A(f'ds_write_b128 v{VPW}, v[{tm[0]}:{tm[3]}]')
    g.A(f'v_add_f32 v{S}, v{S}, v{S+1}\nv_add_f32 v{S+2}, v{S+2}, v{S+3}\nv_add_f32 v{S+4}, v{S+4}, v{S+5}\nv_add_f32 v{S+6}, v{S+6}, v{S+7}')
    g.A(f'v_add_f32 v{S}, v{S}, v{S+2}\nv_add_f32 v{S+4}, v{S+4}, v{S+6}\nv_add_f32 v{S}, v{S}, v{S+4}')
    allreduce_kq(g, [S], [S + 1])
    g.A(f'ds_write_b32 v{VMW}, v{S} offset:256')
    barrier(g)
    g.A(f'ds_read_b128 v[{VD}:{VD+3}], v{VMX} offset:256\nds_read_b128 v[{VD+4}:{VD+7}], v{VMX} offset:272')
    for s in range(8): g.A(f'ds_read_b128 v[{PF+4*s}:{PF+4*s+3}], v{VPR} offset:{s*1024}')
    g.A(f's_and_b32 s{ST2}, s{SXC}, 3\ns_lshl_b32 s{ST2}, s{ST2}, 4\ns_add_u32 s{ST2}, s{ST2}, s{SU}\ns_lshr_b32 s{ST1}, s{SXC}, 2')
    g.A(f's_lshl_b32 s{ST3}, s{ST2}, 7\ns_lshl_b32 s{ST0}, s{ST1}, 5\ns_add_u32 s{ST3}, s{ST3}, s{ST0}\ns_add_u32 s{ST3}, s{ST3}, {MLP:#x}')
    g.A(f's_lshl_b32 s{ST2}, s{ST2}, 13\ns_lshl_b32 s{ST0}, s{SW}, 10\ns_add_u32 s{ST2}, s{ST2}, s{ST0}\ns_lshl_b32 s{ST0}, s{ST1}, 6\ns_add_u32 s{ST2}, s{ST2}, s{ST0}\ns_add_u32 s{ST2}, s{ST2}, {OP:#x}')
    g.A(f's_cmp_lg_u32 s{SW}, 7\ns_cbranch_scc1 L_B_noml')
    g.A('s_waitcnt lgkmcnt(8)')
    g.A(f'v_add_f32 v{VD}, v{VD}, v{VD+1}\nv_add_f32 v{VD+2}, v{VD+2}, v{VD+3}\nv_add_f32 v{VD+4}, v{VD+4}, v{VD+5}\nv_add_f32 v{VD+6}, v{VD+6}, v{VD+7}')
    g.A(f'v_add_f32 v{VD}, v{VD}, v{VD+2}\nv_add_f32 v{VD+4}, v{VD+4}, v{VD+6}\nv_add_f32 v{m+1}, v{VD}, v{VD+4}')
    g.A(f'v_and_or_b32 v{m+1}, v{m+1}, s{SMASK}, v{VTAG}\nv_lshrrev_b32 v{VT}, 1, v{VOS}')
    g.A(f's_mov_b64 exec, 0xff\nbuffer_store_dwordx2 v[{m}:{m+1}], v{VT}, s[{S_WS}:{S_WS+3}], s{ST3} offen sc1\ns_mov_b64 exec, -1')
    g.A('L_B_noml:')
    acc = VACC[0]
    for s in range(8):
        g.A(f's_waitcnt lgkmcnt({7 - s})')
        cin = '0' if s == 0 else f'v[{acc}:{acc+3}]'
        g.A(f'v_mfma_f32_16x16x32_bf16 v[{acc}:{acc+3}], v[{VFR+4*s}:{VFR+4*s+3}], v[{PF+4*s}:{PF+4*s+3}], {cin}')
    g.A(f's_mov_b32 exec_lo, 0x00ff00ff\ns_mov_b32 exec_hi, 0x00ff00ff')
    g.A(f'v_and_or_b32 v{acc}, v{acc}, s{SMASK}, v{VTAG}\nv_and_or_b32 v{acc+3}, v{acc+3}, s{SMASK}, v{VTAG}')
    g.A(f'buffer_store_dwordx4 v[{acc}:{acc+3}], v{VOS}, s[{S_WS}:{S_WS+3}], s{ST2} offen sc1'); g.issued('st')
    g.A('s_mov_b64 exec, -1'); g.stamp(3)
    emit(20, cfg.get('B_w2', 4))
    g.A(f's_cmp_ge_u32 s{SU}, 14\ns_cbranch_scc1 L_B_spare')
    vm_save = list(g.vm)
    emit(cfg.get('B_e4', 24), cfg.get('B_w2', 4))
    g.wait('p1b')
    p1_stage(g, W1B, 0, 32); g.stamp(4)
    emit(28, cfg.get('B_w2', 4))
    g.A(f's_lshl_b32 s{ST1}, s{SXC}, 13\ns_add_u32 s{ST1}, s{ST1}, {MODP + 16*8192:#x}\ns_add_u32 s{ST2}, s{ST1}, 0x10000\ns_add_u32 s{ST3}, s{ST1}, 0x20000')
    ga, sb, cb = VD, VD + 4, VD + 8
    poll(g, [(ga, 4, VG16, ST1, 0), (sb, 4, VG16, ST2, 0), (cb, 4, VG16, ST3, 0)]); g.stamp(5)
    rscatter(g, [ga, sb, cb])
    rb_pair(g, ga, cb, VD + 1)
    g.A(f'v_mov_b32 v{VGA}, v{ga}\nv_add_f32 v{cb}, 1.0, v{cb}')
    g.A(f'v_cvt_pk_bf16_f32 v{VTD}, v{cb}, v{cb}\nv_cvt_pk_bf16_f32 v{VX}, v{sb}, v{sb}')
    wr = [[W1 + 8 * i, W1 + 8 * i + 4] for i in range(4)]
    gemv(g, [VTD], wr, VACC)
    A2 = [VD + 16, VD + 20]
    gemv(g, [VX], wr, A2)
    red_write(g, VACC, 1)
    red_write(g, A2, 3)
    g.A(f's_lshl_b32 s{ST2}, s{SU}, 4\ns_add_u32 s{ST2}, s{ST2}, s{SXC}\ns_lshl_b32 s{ST2}, s{ST2}, 10\ns_add_u32 s100, s{ST2}, {HIDP:#x}')
    g.A(f's_add_u32 s{ST2}, s100, {HTERM:#x}\ns_add_u32 s{ST3}, s100, {2*HTERM:#x}')
    barrier(g)
    publish(g, 1, 2, ST2, 8192)
    publish(g, 3, 2, ST3, 8192); g.stamp(6)
    g.A(f'v_and_b32 v{VTD}, s{SHI}, v{VTD}')
    g.A(f's_lshl_b32 s{ST2}, s{SXC}, 14\ns_add_u32 s{ST2}, s{ST2}, {ATP:#x}\ns_add_u32 s{ST3}, s{ST2}, 0x2000')
    poll(g, [(VD, 4, VG16, ST2, 0), (VD + 4, 4, VG16, ST3, 0)]); g.stamp(7)
    for i in range(4): g.A(f'v_add_f32 v{VD+i}, v{VD+i}, v{VD+4+i}')
    rscatter(g, [VD])
    rb(g, VD)
    g.A(f'v_mul_f32 v{VD}, v{VD}, v{VGA}'); rb(g, VD)
    g.A(f'v_add_f32 v{VX2}, v{VX2}, v{VD}'); rb(g, VX2)
    g.A(f'v_mul_f32 v{VD}, v{VX2}, v{VTD}\nv_cvt_pk_bf16_f32 v{VX}, v{VD}, v{VD}')
    gemv(g, [VX], wr, VACC)
    g.A(f'v_mov_b32 v{VD}, v{VX2}\nv_mul_f32 v{VD+1}, v{VX2}, v{VX2}')
    g.A(f'v_permlane32_swap_b32 v{VD}, v{VD+1}\nv_add_f32 v{VD}, v{VD}, v{VD+1}\nv_mov_b32 v{VD+1}, v{VD}\nv_permlane16_swap_b32 v{VD}, v{VD+1}\nv_add_f32 v{VD}, v{VD}, v{VD+1}')
    red_write(g, VACC, 5)
    for mode in ['quad_perm:[1,0,3,2]', 'quad_perm:[2,3,0,1]']:
        g.A(f'v_add_f32_dpp v{VD}, v{VD}, v{VD} {mode} {DPPF}')
    g.A(f'ds_write_b32 v{VST}, v{VD}')
    g.A(f's_mov_b32 s{ST2}, s100')
    barrier(g)
    g.A(f'ds_read_b64 v[{VD+8}:{VD+9}], v{VSR}')
    publish(g, 5, 2, ST2, 8192)
    g.A(f's_cmp_lg_u32 s{SW}, 2\ns_cbranch_scc1 L_B_nostat')
    g.A(f's_lshl_b32 s{ST2}, s{SXC}, 4\ns_add_u32 s{ST2}, s{ST2}, s{SU}\ns_lshl_b32 s{ST2}, s{ST2}, 7\ns_add_u32 s{ST2}, s{ST2}, {STP:#x}')
    pair_reduce_s3(g, VD + 8, VD + 10)
    g.A(f'v_and_or_b32 v{VD+8}, v{VD+8}, s{SMASK}, v{VTAG}\nv_lshrrev_b32 v{VT}, 5, v{VL}\nv_lshlrev_b32 v{VT}, 2, v{VT}\nv_lshl_add_u32 v{VT}, v{VB}, 3, v{VT}')
    g.A(f's_mov_b32 exec_lo, 0x11\ns_mov_b32 exec_hi, 0x11\nbuffer_store_dword v{VD+8}, v{VT}, s[{S_WS}:{S_WS+3}], s{ST2} offen sc1\ns_mov_b64 exec, -1')
    g.A('L_B_nostat:'); g.stamp(8)
    g.A(f's_cmp_lg_u32 s{SU}, 0\ns_cbranch_scc1 L_B_done')
    g.A(f's_lshl_b32 s{ST1}, s{SXC}, 13\ns_add_u32 s{ST1}, s{ST1}, {MODP + 40*8192:#x}')
    GB = VD + 12
    poll(g, [(GB, 4, VG16, ST1, 0)])
    rscatter(g, [GB]); rb(g, GB)
    g.A(f's_lshl_b32 s{ST1}, s{SXC}, 8\ns_lshl_b32 s{ST0}, s{SW}, 5\ns_add_u32 s{ST1}, s{ST1}, s{ST0}')
    g.A(f's_lshl_b32 s{ST2}, s{SXC}, 14\ns_add_u32 s{ST2}, s{ST2}, {OUTP:#x}\ns_add_u32 s{ST3}, s{ST2}, 0x2000')
    poll(g, [(VD, 4, VG16, ST2, 0), (VD + 4, 4, VG16, ST3, 0)]); g.stamp(9)
    for i in range(4): g.A(f'v_add_f32 v{VD+i}, v{VD+i}, v{VD+4+i}')
    rscatter(g, [VD])
    rb(g, VD)
    g.A(f'v_mul_f32 v{VD}, v{VD}, v{GB}'); rb(g, VD)
    g.A(f'v_add_f32 v{VD}, v{VX2}, v{VD}\nv_cvt_pk_bf16_f32 v{VD}, v{VD}, v{VD}')
    g.A(f's_mov_b32 exec_lo, 0x00ff00ff\ns_mov_b32 exec_hi, 0x00ff00ff')
    g.A(f'buffer_store_short v{VD}, v{VE}, s[{S_OUT}:{S_OUT+3}], s{ST1} offen')
    g.A('s_mov_b64 exec, -1')
    if 'diag' in cfg:
        k = cfg['diag']
        g.stamp(10)
        g.A(f's_add_u32 s{ST2}, s{SST+2*k}, 4000')
        g.A(f'L_diag:\ns_memrealtime s[80:81]\ns_waitcnt lgkmcnt(0)\ns_sub_u32 s{ST3}, s80, s{ST2}\ns_cmp_lt_i32 s{ST3}, 0\ns_cbranch_scc1 L_diag')
    g.A(f's_or_b32 s{ST0}, s{SXC}, s{SW}\ns_cmp_lg_u32 s{ST0}, 0\ns_cbranch_scc1 L_B_done')
    g.A(f'v_mov_b32 v{VD+2}, s{STAG}\nv_mov_b32 v{VT}, 0\ns_mov_b64 exec, 1\nbuffer_store_dword v{VD+2}, v{VT}, s[{S_WS}:{S_WS+3}], 0 offen sc1\ns_mov_b64 exec, -1')
    g.A('L_B_done:'); g.stamp(10)
    finish(g)
    g.A('L_B_spare:')
    g.vm = vm_save
    g.wait('p1b')
    p1_stage(g, W1B, 0, 32); g.stamp(4)
    finish(g)

HEAD = open('adaLN_cond__sliding_block_cached__dense_activation_relu__decode.s.ref').read().split('; Override launch')[0]

def generate(cfg):
    g = G(cfg)
    prologue(g)
    vm0 = list(g.vm)
    g.A('s_cmp_ge_u32 s2, 128\ns_cbranch_scc1 L_headB')
    prog_A(g, True); vmA = list(g.vm)
    g.A('L_headB:'); g.vm = list(vm0)
    prog_B(g, True); vmB = list(g.vm)
    g.A('L_progA:'); g.vm = vmA
    prog_A(g, False)
    g.A('L_progB:'); g.vm = vmB
    prog_B(g, False)
    g.A('L_exit:\ns_endpgm')
    body = pad_hazards(g.L)
    out = [HEAD.rstrip(), f'; @launch grid=(256,1,1) block=(512,1,1) lds={LDS_BYTES}',
           '.amdgcn_target "amdgcn-amd-amdhsa--gfx950"', '.text', f'.globl {KNAME}', '.p2align 8', f'.type {KNAME},@function', f'{KNAME}:']
    out += [(l if l.endswith(':') else '    ' + l) for l in body]
    out += ['.section .rodata,"a"', '.p2align 6', f'.amdhsa_kernel {KNAME}', '  .amdhsa_next_free_vgpr 256', '  .amdhsa_next_free_sgpr 102',
            '  .amdhsa_accum_offset 256', '  .amdhsa_group_segment_fixed_size 0', '  .amdhsa_kernarg_size 104', '  .amdhsa_user_sgpr_count 2',
            '  .amdhsa_user_sgpr_kernarg_segment_ptr 1', '  .amdhsa_system_sgpr_workgroup_id_x 1', '  .amdhsa_float_denorm_mode_32 3', '.end_amdhsa_kernel', '']
    return '\n'.join(out)

if __name__ == '__main__':
    cfg = {}
    for a in sys.argv[2:]:
        k, v = a.split('='); cfg[k] = int(v)
    open(sys.argv[1], 'w').write(generate(cfg))
```

```python
import sys
from asmlib import pad_hazards

KNAME = 'adaLN_cond__sliding_block_cached__dense_activation_relu__decode_kernel'

LOC = 0x100000; LSTR = 0x20000; YOFF = 0x100000
O_MOD = 0
O_AT = 0xC000
O_OUT = 0x10000
O_QL = 0x14000
O_FLG = 0x15000
O_H2 = 0x15800
O_PF = 0x16000
QP   = 0x300000
OP   = 0x080000
MLP  = 0x340000
STP  = 0x348000
HIDP = 0x350000
PROF = 0x600000
WS_BYTES = 0x800000

RSTR = 1280; RBUF = 8 * RSTR
L_K = 0; L_V = 65536; L_RED = 131072; L_Q = L_RED; L_PX = L_Q + 2304; L_MAX = L_PX + 4096
L_SUM = L_MAX + 256; L_STAT = L_SUM + 256; L_END = L_STAT + 128
LDS_BYTES = (L_END + 255) // 256 * 256

LOG2E = 0x3fb8aa3b
NLOG2E = 0xbfb8aa3b
SCALE = 0x3db504f3
SPIN_MAX = 40000
HINT_MAX = 200
DPPF = 'row_mask:0xf bank_mask:0xf'

class G:
    def __init__(self, cfg):
        self.L = []; self.cfg = cfg; self.vm = []; self.nlab = 0; self.nolock = False
    def A(self, s):
        for line in s.split('\n'):
            line = line.strip()
            if line: self.L.append(line)
    def lab(self, p):
        self.nlab += 1; return f'L_{p}_{self.nlab}'
    def issued(self, name): self.vm.append(name)
    def wait(self, name):
        idx = [i for i, n in enumerate(self.vm) if n == name]
        if not idx: return
        n = len(self.vm) - 1 - idx[-1]
        self.A(f's_waitcnt vmcnt({n})'); self.vm = self.vm[idx[-1] + 1:]
    def window(self, win):
        if win and len(self.vm) >= win:
            self.A(f's_waitcnt vmcnt({win-1})'); self.vm = self.vm[len(self.vm) - (win - 1):] if win > 1 else []
            if self.cfg.get('lock') and not self.nolock: self.A('s_barrier')
    def stamp(self, k):
        if self.cfg.get('prof'):
            self.A(f's_memrealtime s[{SST+2*k}:{SST+1+2*k}]')
            self.A('s_waitcnt lgkmcnt(0)')
    def sleep(self, key, default):
        n = self.cfg.get(key, default)
        if n: self.A(f's_sleep {n}')

VL, VKQ, VN, VB, VE = 1, 2, 3, 4, 5
VIDX, VKF = 6, 7
VTAG, VG16, VRA, VRR, VPUB, VT = 10, 11, 12, 13, 14, 15
VF = [16, 20]
VACC = [24, 28]
VD = 32
VS = 64
VX = 66
VRRQ = 68
VFL = 69
VEP = 70
S_WS, S_MOD, S_K, S_V, S_WQ, S_WO, S_W1, S_W2, S_X, S_CC, S_OUT = 4, 8, 12, 16, 20, 24, 28, 32, 36, 40, 44
SST = 48; NST = 14
SP0 = 76
SLOC = 101
SW, SXC, SU, STAG = 84, 85, 86, 87
SK0, SK1 = 88, 89
ST0, ST1, ST2, ST3 = 90, 91, 92, 93
SMASK, SHI, SCNT, SPOLL, SEX = 94, 95, 96, 97, 98
SH = 100

def srdc(g, d, size):
    g.A(f's_mov_b32 s{d+2}, {size:#x}\ns_mov_b32 s{d+3}, 0x20000')

def wload(g, name, dst, vaddr, srdn, soff, imm=0, win=0):
    g.window(win)
    so = '0'
    if soff:
        g.A(f's_mov_b32 s{ST0}, {soff:#x}'); so = f's{ST0}'
    o = f' offset:{imm}' if imm else ''
    g.A(f'buffer_load_dwordx4 v[{dst}:{dst+3}], v{vaddr}, s[{srdn}:{srdn+3}], {so} offen{o} nt')
    g.issued(name)

def rb(g, a):
    g.A(f'v_cvt_pk_bf16_f32 v{a}, v{a}, v{a}\nv_and_b32 v{a}, s{SHI}, v{a}')
def rb_pair(g, a, b, t):
    g.A(f'v_cvt_pk_bf16_f32 v{t}, v{a}, v{b}\nv_lshlrev_b32 v{a}, 16, v{t}\nv_and_b32 v{b}, s{SHI}, v{t}')
def rb_list(g, regs, temps):
    for k in range(0, len(regs), 2): rb_pair(g, regs[k], regs[k+1], temps[(k // 2) % len(temps)])

def rscatter(g, quads, ror=True):
    for X in quads: g.A(f'v_permlane32_swap_b32 v{X}, v{X+2}\nv_permlane32_swap_b32 v{X+1}, v{X+3}')
    for X in quads: g.A(f'v_add_f32 v{X}, v{X}, v{X+2}\nv_add_f32 v{X+1}, v{X+1}, v{X+3}')
    for X in quads: g.A(f'v_permlane16_swap_b32 v{X}, v{X+1}')
    for X in quads: g.A(f'v_add_f32 v{X}, v{X}, v{X+1}')
    if ror:
        for X in quads: g.A(f'v_add_f32_dpp v{X}, v{X}, v{X} row_ror:8 {DPPF}')

def allreduce_kq(g, regs, temps, op='add'):
    for sw in ['v_permlane16_swap_b32', 'v_permlane32_swap_b32']:
        for r, t in zip(regs, temps): g.A(f'v_mov_b32 v{t}, v{r}')
        for r, t in zip(regs, temps): g.A(f'{sw} v{r}, v{t}')
        for r, t in zip(regs, temps): g.A(f'v_{op}_f32 v{r}, v{r}, v{t}')

def zero_acc(g, accs):
    for acc in accs:
        for r in range(4): g.A(f'v_mov_b32 v{acc+r}, 0')

def gemv(g, xs, wregs, accs):
    n = 2 * len(xs)
    def build(i):
        f = VF[i & 1]; t = i & 1
        for r in range(4):
            sq = 2 * t + (r >> 1)
            g.A(f'v_mov_b32_dpp v{f+r}, v{xs[i >> 1]} quad_perm:[{sq},{sq},{sq},{sq}] row_mask:0xf bank_mask:{"0xc" if r & 1 else "0x3"}')
    build(0)
    for i in range(n):
        if i + 1 < n: build(i + 1)
        f = VF[i & 1]
        for c, acc in enumerate(accs):
            w = wregs[i][c]
            g.A(f'v_smfmac_f32_16x16x64_bf16 v[{acc}:{acc+3}], v[{f}:{f+3}], v[{w}:{w+7}], v{VIDX}')

def xpack(g, dst, src):
    g.A(f'v_cvt_pk_bf16_f32 v{dst}, v{src}, 0')

def red_write(g, accs, slot):
    if slot == 'R':
        g.A(f'v_add_u32 v{VT}, {L_RED}, v{VRA}'); a = VT; base = 0
    else:
        a = VRA; base = slot * RBUF
    for c, acc in enumerate(accs):
        g.A(f'ds_write_b128 v{a}, v[{acc}:{acc+3}] offset:{base + c*RBUF}')

def publish(g, slot, nacc, sbase, local, rr=VRR):
    skip = g.lab('pub')
    if nacc == 1: g.A(f's_cmp_ge_u32 s{SW}, 4\ns_cbranch_scc1 {skip}')
    d = VD
    if slot == 'R':
        g.A(f'v_add_u32 v{VT}, {L_RED}, v{rr}'); a = VT; o = 0
    else:
        a = rr; o = slot * RBUF // 256
    for k in range(4):
        g.A(f'ds_read2st64_b32 v[{d+2*k}:{d+2*k+1}], v{a} offset0:{o + 10*k} offset1:{o + 10*k + 5}')
    g.A(f's_waitcnt lgkmcnt(2)\nv_add_f32 v{d}, v{d}, v{d+1}\nv_add_f32 v{d+2}, v{d+2}, v{d+3}')
    g.A(f's_waitcnt lgkmcnt(0)\nv_add_f32 v{d+4}, v{d+4}, v{d+5}\nv_add_f32 v{d+6}, v{d+6}, v{d+7}')
    g.A(f'v_add_f32 v{d}, v{d}, v{d+2}\nv_add_f32 v{d+4}, v{d+4}, v{d+6}\nv_add_f32 v{d}, v{d}, v{d+4}')
    g.A(f'v_and_or_b32 v{d}, v{d}, s{SMASK}, v{VTAG}')
    store1(g, d, VPUB, sbase, local)
    g.A(f'{skip}:')

def store1(g, d, va, sbase, local):
    if local and g.cfg.get('local', 1):
        g.A(f'buffer_store_dword v{d}, v{va}, s[{S_WS}:{S_WS+3}], s{sbase} offen')
        g.A(f's_add_u32 s{sbase}, s{sbase}, {YOFF:#x}')
    g.A(f'buffer_store_dword v{d}, v{va}, s[{S_WS}:{S_WS+3}], s{sbase} offen sc1')

def acc_off(g, s, stride):
    g.A(f's_lshr_b32 s{ST0}, s{SW}, 2\ns_mul_i32 s{ST0}, s{ST0}, {stride}\ns_add_u32 s{s}, s{s}, s{ST0}')

def poll(g, loads, local, sleep, mid=None):
    if g.cfg.get('streamonly'):
        if g.cfg.get('streamonly') == 1: g.A('s_waitcnt vmcnt(0)'); g.vm = []
        return
    top = g.lab('poll'); done = g.lab('ok')
    g.A(f's_mov_b32 s{SCNT}, 0')
    offs = []
    if local:
        for l in loads:
            if l[3] not in offs: offs.append(l[3])
        for k, o in enumerate(offs): g.A(f's_add_u32 s{SP0+k}, s{SLOC}, {o:#x}')
    g.A(f'{top}:')
    for dst, n, va, so, imm in loads:
        sfx = {4: 'x4', 2: 'x2', 1: ''}[n]
        o = f' offset:{imm}' if imm else ''
        sreg = f's{SP0 + offs.index(so)}' if local else (f's{so}' if so is not None else '0')
        dreg = f'v[{dst}:{dst+n-1}]' if n > 1 else f'v{dst}'
        g.A(f'buffer_load_dword{sfx} {dreg}, v{va}, s[{S_WS}:{S_WS+3}], {sreg} offen{o} sc1')
    g.A(f's_add_u32 s{SCNT}, s{SCNT}, 1')
    if local and g.cfg.get('local', 1):
        g.A(f's_and_b32 s{ST0}, s{SCNT}, 127\ns_cmp_eq_u32 s{ST0}, 127\ns_cselect_b32 s{ST0}, {YOFF:#x}, 0\ns_add_u32 s{ST0}, s{ST0}, s{SLOC}')
        for k, o in enumerate(offs): g.A(f's_add_u32 s{SP0+k}, s{ST0}, {o:#x}')
    first = True
    for k, (dst, n, va, so, imm) in enumerate(loads):
        g.A(f's_waitcnt vmcnt({len(loads)-1-k})')
        for r in sorted({dst, dst + n - 1}):
            if first: g.A(f'v_xor_b32 v{VT}, v{r}, v{VTAG}'); first = False
            else: g.A(f'v_bitop3_b32 v{VT}, v{VT}, v{r}, v{VTAG} bitop3:0xf6')
        if mid and k in mid: mid[k]()
    g.A(f'v_and_b32 v{VT}, 0xff, v{VT}\nv_cmp_ne_u32 vcc, 0, v{VT}')
    g.A(f's_cbranch_vccz {done}')
    if sleep: g.A(f's_sleep {sleep}')
    g.A(f's_cmp_lt_u32 s{SCNT}, {SPIN_MAX}\ns_cbranch_scc1 {top}')
    g.A(f'{done}:')
    if g.cfg.get('prof'): g.A(f's_lshl_b32 s{SPOLL}, s{SPOLL}, 4\ns_min_u32 s{SCNT}, s{SCNT}, 15\ns_or_b32 s{SPOLL}, s{SPOLL}, s{SCNT}')
    g.vm = []

def hint_wait(g, typ, nfl, wave, pair=False, sleep=1):
    if not g.cfg.get('hints', 1): return
    top = g.lab('hint'); done = g.lab('hok')
    g.A(f's_cmp_lg_u32 s{SW}, {wave}\ns_cbranch_scc1 {done}')
    if pair:
        g.A(f's_lshl_b32 s{SP0}, s{SU}, 7\ns_add_u32 s{SP0}, s{SP0}, s{SLOC}\ns_add_u32 s{SP0}, s{SP0}, {O_PF + typ*2048:#x}')
    else:
        g.A(f's_add_u32 s{SP0}, s{SLOC}, {O_FLG + typ*128:#x}')
    g.A(f's_mov_b32 s{SCNT}, 0\nv_min_u32 v{VFL}, {nfl-1}, v{VL}\nv_lshlrev_b32 v{VFL}, 2, v{VFL}')
    g.A(f'{top}:')
    g.A(f'buffer_load_dword v{VT}, v{VFL}, s[{S_WS}:{S_WS+3}], s{SP0} offen sc1\ns_add_u32 s{SCNT}, s{SCNT}, 1\ns_waitcnt vmcnt(0)')
    g.A(f'v_cmp_ne_u32 vcc, v{VT}, v{VEP}\ns_cbranch_vccz {done}')
    if sleep: g.A(f's_sleep {sleep}')
    g.A(f's_cmp_lt_u32 s{SCNT}, {HINT_MAX}\ns_cbranch_scc1 {top}')
    g.A(f'{done}:')
    g.A('s_barrier')

def hint_set(g, typ, wave, pair=False):
    if not g.cfg.get('hints', 1): return
    skip = g.lab('hs')
    g.A(f's_cmp_lg_u32 s{SW}, {wave}\ns_cbranch_scc1 {skip}')
    g.A(f's_lshl_b32 s{ST0}, s{SU}, {7 if pair else 2}\ns_add_u32 s{ST0}, s{ST0}, s{SLOC}\ns_add_u32 s{ST0}, s{ST0}, {(O_PF + typ*2048) if pair else (O_FLG + typ*128):#x}')
    g.A(f's_mov_b64 exec, 1\nbuffer_store_dword v{VEP}, v{VL}, s[{S_WS}:{S_WS+3}], s{ST0} offen\ns_mov_b64 exec, -1')
    g.A(f'{skip}:')

def barrier(g): g.A('s_waitcnt lgkmcnt(0)\ns_barrier')

def silu(g, src):
    t = VD + 8
    g.A(f'v_lshlrev_b32 v{t}, 16, v{src}\nv_mul_f32 v{t+1}, {NLOG2E:#x}, v{t}\nv_exp_f32 v{t+1}, v{t+1}\nv_add_f32 v{t+1}, 1.0, v{t+1}')
    g.A(f'v_rcp_f32 v{t+2}, v{t+1}\nv_mul_f32 v{t+3}, v{t}, v{t+2}')
    xpack(g, VS, t + 3)

def ln_scalars(g, s1, s2, t):
    g.A(f'v_mul_f32 v{s1}, 0x3a800000, v{s1}\nv_mul_f32 v{s2}, 0x3a800000, v{s2}')
    g.A(f'v_fma_f32 v{s2}, -v{s1}, v{s1}, v{s2}\nv_max_f32 v{s2}, 0, v{s2}')
    rb_pair(g, s1, s2, t)
    g.A(f'v_add_f32 v{s2}, 0x3727c5ac, v{s2}')
    rb(g, s2)
    g.A(f'v_sqrt_f32 v{s2}, v{s2}')
    rb(g, s2)

def pair_reduce_s3(g, X, T):
    g.A(f'v_permlane32_swap_b32 v{X}, v{X+1}\nv_add_f32 v{X}, v{X}, v{X+1}\nv_mov_b32 v{T}, v{X}\nv_permlane16_swap_b32 v{X}, v{T}\nv_add_f32 v{X}, v{X}, v{T}')
    g.A(f'v_add_f32_dpp v{X}, v{X}, v{X} row_ror:8 {DPPF}')

def tile_addr(g, va, srow, stride, scol, kf=VKF):
    g.A(f's_mul_i32 s{srow}, s{srow}, {stride}\ns_add_u32 s{srow}, s{srow}, s{scol}')
    g.A(f'v_mul_u32_u24 v{va}, {stride}, v{kf}\nv_lshl_add_u32 v{va}, v{VN}, 4, v{va}\nv_add_u32 v{va}, s{srow}, v{va}')

def p1_addr(g, va, cg_base):
    g.A(f's_and_b32 s{ST2}, s{SU}, 7\ns_lshl_b32 s{ST2}, s{ST2}, 7\ns_lshl_b32 s{ST1}, s{SW}, 4\ns_add_u32 s{ST2}, s{ST2}, s{ST1}')
    g.A(f's_and_b32 s{ST1}, s{SU}, 8\ns_add_u32 s{ST1}, s{ST1}, s{SXC}')
    if cg_base: g.A(f's_add_u32 s{ST1}, s{ST1}, {cg_base}')
    g.A(f's_lshl_b32 s{ST1}, s{ST1}, 8')
    tile_addr(g, va, ST2, 12288, ST1)

def finish(g):
    if g.cfg.get('streamonly'): g.A('s_waitcnt vmcnt(0)'); g.stamp(10)
    if g.cfg.get('prof'):
        g.A(f's_lshl_b32 s{ST0}, s2, 3\ns_add_u32 s{ST0}, s{ST0}, s{SW}\ns_lshl_b32 s{ST0}, s{ST0}, 6\ns_add_u32 s{ST0}, s{ST0}, {PROF:#x}')
        g.A(f's_getreg_b32 s{ST1}, hwreg(HW_REG_XCC_ID)')
        g.A(f'v_mov_b32 v{VT}, 0\ns_mov_b64 exec, 1')
        for k in range(NST):
            g.A(f'v_mov_b32 v{VD}, s{SST+2*k}\nbuffer_store_dword v{VD}, v{VT}, s[{S_WS}:{S_WS+3}], s{ST0} offen offset:{4*k}')
        g.A(f'v_mov_b32 v{VD}, s{SPOLL}\nbuffer_store_dword v{VD}, v{VT}, s[{S_WS}:{S_WS+3}], s{ST0} offen offset:56')
        g.A(f'v_mov_b32 v{VD}, s{ST1}\nbuffer_store_dword v{VD}, v{VT}, s[{S_WS}:{S_WS+3}], s{ST0} offen offset:60')
    g.A('s_endpgm')

def prologue(g):
    cfg = g.cfg
    if cfg.get('prof'): g.A(f's_memrealtime s[{SST}:{SST+1}]')
    g.A(f's_load_dwordx2 s[{S_WS}:{S_WS+1}], s[0:1], 96\ns_load_dwordx2 s[{S_MOD}:{S_MOD+1}], s[0:1], 72\ns_load_dwordx2 s[{S_CC}:{S_CC+1}], s[0:1], 64\ns_load_dwordx2 s[{S_X}:{S_X+1}], s[0:1], 0')
    g.A('s_cmp_ge_u32 s2, 256\ns_cbranch_scc1 L_exit')
    g.A(f'v_lshrrev_b32 v{VT}, 6, v0\nv_and_b32 v{VL}, 63, v0')
    g.A(f'v_readfirstlane_b32 s{SW}, v{VT}')
    g.A(f'v_lshrrev_b32 v{VKQ}, 4, v{VL}\nv_and_b32 v{VN}, 15, v{VL}')
    g.A(f's_and_b32 s{SXC}, s2, 7\ns_bfe_u32 s{SU}, s2, 0x40003')
    if cfg.get('xrot'):
        g.A(f's_add_u32 s{SXC}, s{SXC}, s{SU}\ns_and_b32 s{SXC}, s{SXC}, 7')

def code_prefetch(g):
    if not g.cfg.get('code_pf', 1): return
    lab = g.lab('pc'); skip = g.lab('npf')
    g.A(f's_cmp_ge_u32 s{SW}, 4\ns_cbranch_scc1 {skip}')
    g.A(f's_getpc_b64 s[{SEX}:{SEX+1}]')
    g.A(f'{lab}:')
    g.A(f'v_min_u32 v{VT}, (L_exit-{lab})/64, v0\nv_lshlrev_b32 v{VT}, 6, v{VT}')
    g.A(f'global_load_dword v250, v{VT}, s[{SEX}:{SEX+1}]')
    g.A(f'{skip}:')

def late_consts(g, grp):
    g.A(f's_mov_b32 s{SMASK}, 0xffffff00\ns_mov_b32 s{SHI}, 0xffff0000\ns_mov_b32 s{SPOLL}, 0')
    srdc(g, S_WS, WS_BYTES)
    if grp == 'A': srdc(g, S_WO, 4096 * 1024 * 2); srdc(g, S_W2, 3584 * 1024 * 2)
    else: srdc(g, S_W1, 1024 * 3584 * 2); srdc(g, S_OUT, 4096)
    g.A(f's_lshl_b32 s{SLOC}, s{SXC}, 17\ns_add_u32 s{SLOC}, s{SLOC}, {LOC if g.cfg.get("local", 1) else LOC + YOFF:#x}')

def kf_const(g, dst=VKF, mul=2):
    g.A(f'v_and_b32 v{dst}, 1, v{VKQ}\nv_lshrrev_b32 v{VT}, 1, v{VKQ}\nv_lshl_add_u32 v{dst}, v{dst}, {mul}, v{VT}')

def ve_const(g):
    g.A(f'v_bfe_u32 v{VB}, v{VL}, 2, 1\nv_and_b32 v{VE}, 3, v{VL}\nv_lshl_add_u32 v{VE}, v{VE}, 2, v{VKQ}\nv_lshl_add_u32 v{VE}, v{VB}, 10, v{VE}\nv_lshlrev_b32 v{VE}, 1, v{VE}')

def zero_stamps(g):
    if g.cfg.get('prof'):
        for k in range(1, NST): g.A(f's_mov_b64 s[{SST+2*k}:{SST+1+2*k}], 0')

def lane_consts(g, needq):
    g.A(f'v_and_b32 v{VIDX}, 3, v{VL}\nv_mul_u32_u24 v{VIDX}, 0x5555, v{VIDX}')
    for r in range(8): g.A(f'v_mov_b32 v{VF[0]+r}, 0')
    g.A(f'v_lshrrev_b32 v{VG16}, 3, v{VL}\nv_lshlrev_b32 v{VG16}, 10, v{VG16}\nv_and_b32 v{VT}, 7, v{VL}\nv_lshl_add_u32 v{VG16}, v{VT}, 4, v{VG16}')
    g.A(f's_lshl_b32 s{ST0}, s{SW}, 7\nv_add_u32 v{VG16}, s{ST0}, v{VG16}')
    g.A(f's_mul_i32 s{ST0}, s{SW}, {RSTR}\nv_mul_u32_u24 v{VRA}, 288, v{VKQ}\nv_lshl_add_u32 v{VRA}, v{VN}, 4, v{VRA}\nv_add_u32 v{VRA}, s{ST0}, v{VRA}')
    g.A(f's_and_b32 s{ST0}, s{SW}, 3\ns_lshl_b32 s{ST0}, s{ST0}, 6\nv_add_u32 v{VD}, s{ST0}, v{VL}\nv_lshlrev_b32 v{VPUB}, 2, v{VD}')
    g.A(f's_lshr_b32 s{ST0}, s{SW}, 2\ns_mul_i32 s{ST0}, s{ST0}, {RBUF}\nv_and_b32 v{VD+1}, 3, v{VD}\nv_lshl_add_u32 v{VD+1}, v{VD+1}, 2, s{ST0}')
    g.A(f'v_bfe_u32 v{VD+2}, v{VD}, 2, 1\nv_bfe_u32 v{VD+3}, v{VD}, 4, 1\nv_lshl_add_u32 v{VD+3}, v{VD+2}, 1, v{VD+3}\nv_mul_u32_u24 v{VRR}, 288, v{VD+3}')
    g.A(f'v_lshrrev_b32 v{VD+3}, 5, v{VD}\nv_bfe_u32 v{VD+4}, v{VD}, 3, 1\nv_lshl_add_u32 v{VD+3}, v{VD+3}, 1, v{VD+4}\nv_lshl_add_u32 v{VRR}, v{VD+3}, 4, v{VRR}\nv_add_u32 v{VRR}, v{VRR}, v{VD+1}')
    if needq:
        g.A(f'v_lshrrev_b32 v{VD+3}, 7, v{VD}\nv_lshl_add_u32 v{VD+3}, v{VD+2}, 1, v{VD+3}\nv_mul_u32_u24 v{VRRQ}, 288, v{VD+3}')
        g.A(f'v_bfe_u32 v{VD+3}, v{VD}, 3, 4\nv_lshl_add_u32 v{VRRQ}, v{VD+3}, 4, v{VRRQ}\nv_add_u32 v{VRRQ}, v{VRRQ}, v{VD+1}')
    g.A('s_waitcnt lgkmcnt(0)')
    g.A(f's_add_u32 s{STAG}, s{STAG}, 1\ns_and_b32 s{ST0}, s{STAG}, 0xff\nv_mov_b32 v{VTAG}, s{ST0}\nv_mov_b32 v{VEP}, s{STAG}')

def load_c(g, vc):
    g.A(f's_lshl_b32 s{ST1}, s{SW}, 5\ns_and_b32 s{ST0}, s{SU}, 7\ns_lshl_b32 s{ST0}, s{ST0}, 8\ns_add_u32 s{ST0}, s{ST0}, s{ST1}')
    g.A(f'buffer_load_ushort v{vc}, v{VE}, s[{S_CC}:{S_CC+3}], s{ST0} offen'); g.issued('c')
def load_xr(g, vxr):
    g.A(f's_lshl_b32 s{ST1}, s{SW}, 5\ns_lshl_b32 s{ST0}, s{SXC}, 8\ns_add_u32 s{ST0}, s{ST0}, s{ST1}')
    g.A(f'buffer_load_ushort v{vxr}, v{VE}, s[{S_X}:{S_X+3}], s{ST0} offen{" nt" if g.cfg.get("smallnt") else ""}'); g.issued('xr')

def prog_A(g):
    cfg = g.cfg
    W1A, WQ, WO, W2 = 80, 96, 128, 160
    VA1, VAQ, VAO, VA2 = 210, 211, 212, 214
    VC, VXR, VXF, VLN = 216, 217, 218, 220
    VGO, VGM, VGH, VGQ, VQS = 222, 223, 224, 226, 227
    g.A(f's_load_dwordx2 s[{S_WQ}:{S_WQ+1}], s[0:1], 24\ns_load_dwordx2 s[{S_WO}:{S_WO+1}], s[0:1], 32\ns_load_dwordx2 s[{S_W2}:{S_W2+1}], s[0:1], 56')
    kf_const(g)
    p1_addr(g, VA1, 0)
    srdc(g, S_MOD, 1024 * 6144 * 2); srdc(g, S_CC, 4096); srdc(g, S_X, 4096); srdc(g, S_WQ, 1024 * 4096 * 2)
    ve_const(g)
    g.A(f's_lshl_b32 s{ST2}, s{SXC}, 7\ns_lshl_b32 s{ST1}, s{SW}, 4\ns_add_u32 s{ST2}, s{ST2}, s{ST1}\ns_lshl_b32 s{ST1}, s{SU}, 9')
    tile_addr(g, VAQ, ST2, 8192, ST1)
    g.A(f's_lshl_b32 s{ST1}, s{SW}, 5\ns_and_b32 s{ST2}, s{SU}, 7\ns_lshl_b32 s{ST2}, s{ST2}, 8\ns_add_u32 s{ST2}, s{ST2}, s{ST1}')
    g.A('s_waitcnt lgkmcnt(0)')
    g.A(f's_load_dword s{STAG}, s[{S_WS}:{S_WS+1}], 0')
    g.A(f'buffer_load_ushort v{VC}, v{VE}, s[{S_CC}:{S_CC+3}], s{ST2} offen{" nt" if cfg.get("smallnt") else ""}'); g.issued('c')
    for t in range(2):
        for h in range(2): wload(g, 'p1a', W1A + 8 * t + 4 * h, VA1, S_MOD, (8 * t + 2 * h) * 12288)
    load_xr(g, VXR)
    g.A(f'v_lshrrev_b32 v{VT}, 5, v{VL}\nv_lshlrev_b32 v{VT}, 11, v{VT}\nv_and_b32 v{VD}, 31, v{VL}\nv_lshl_add_u32 v{VT}, v{VD}, 3, v{VT}\ns_lshl_b32 s{ST0}, s{SW}, 8')
    g.A(f'buffer_load_dwordx2 v[{VXF}:{VXF+1}], v{VT}, s[{S_X}:{S_X+3}], s{ST0} offen{" nt" if cfg.get("smallnt") else ""}'); g.issued('xf')
    zero_stamps(g); g.stamp(12)
    late_consts(g, 'A')
    lane_consts(g, True)
    zero_acc(g, [VACC[0]])
    g.wait('c')
    silu(g, VC)
    wq_l = [lambda win, t=t, h=h, c=c: wload(g, 'wq', WQ + 16 * t + 8 * c + 4 * h, VAQ, S_WQ, (8 * t + 2 * h) * 8192, c * 256, win) for t in range(2) for h in range(2) for c in range(2)]
    wo_l = [lambda win, i=i, h=h: wload(g, 'wo', WO + 8 * i + 4 * h, VAO, S_WO, (4 * (i >> 1) + 256 * (i & 1) + 2 * h) * 2048, 0, win) for i in range(4) for h in range(2)]
    w2_l = [lambda win, i=i, h=h: wload(g, 'w2', W2 + 8 * i + 4 * h, VA2, S_W2, (8 * i + 2 * h) * 2048, 0, win) for i in range(4) for h in range(2)]
    seq = wq_l + wo_l + w2_l
    pos = [0]
    def emit(upto, win):
        while pos[0] < min(upto, len(seq)): seq[pos[0]](win); pos[0] += 1
    if cfg.get('pure'):
        g.A(f's_lshr_b32 s{ST2}, s{SU}, 2\ns_lshl_b32 s{ST2}, s{ST2}, 10\ns_and_b32 s{ST1}, s{SW}, 1\ns_lshl_b32 s{ST1}, s{ST1}, 9\ns_add_u32 s{ST2}, s{ST2}, s{ST1}')
        g.A(f's_and_b32 s{ST1}, s{SU}, 3\ns_lshl_b32 s{ST1}, s{ST1}, 5\ns_add_u32 s{ST2}, s{ST2}, s{ST1}\ns_lshr_b32 s{ST1}, s{SW}, 1\ns_lshl_b32 s{ST1}, s{ST1}, 3\ns_add_u32 s{ST2}, s{ST2}, s{ST1}\ns_lshl_b32 s{ST1}, s{SXC}, 8')
        kf_const(g, VD + 8, 7)
        tile_addr(g, VAO, ST2, 2048, ST1, VD + 8)
        g.A(f's_mul_i32 s{ST2}, s{SU}, 224\ns_min_u32 s{ST1}, s{SW}, 6\ns_lshl_b32 s{ST1}, s{ST1}, 5\ns_add_u32 s{ST2}, s{ST2}, s{ST1}\ns_lshl_b32 s{ST1}, s{SXC}, 8')
        tile_addr(g, VA2, ST2, 2048, ST1)
        W = cfg['pure']
        emit(4, W + 2); g.stamp(1); emit(12, W); g.stamp(3); emit(20, W); g.stamp(6); emit(24, W); g.A('s_waitcnt vmcnt(0)'); g.stamp(9)
        finish(g)
    emit(cfg.get('A_e0', 4), cfg.get('A_w0', 6))
    g.wait('xf'); g.stamp(1)
    gemv(g, [VS], [[W1A], [W1A + 8]], [VACC[0]])
    s1, s2 = VD, VD + 1
    g.A(f's_mov_b32 s{ST0}, 0x3f803f80\nv_dot2_f32_bf16 v{s1}, v{VXF}, s{ST0}, 0\nv_dot2_f32_bf16 v{s2}, v{VXF}, v{VXF}, 0')
    g.A(f'v_dot2_f32_bf16 v{s1}, v{VXF+1}, s{ST0}, v{s1}\nv_dot2_f32_bf16 v{s2}, v{VXF+1}, v{VXF+1}, v{s2}')
    for mode in ['quad_perm:[1,0,3,2]', 'quad_perm:[2,3,0,1]', 'row_half_mirror', 'row_mirror']:
        for r in (s1, s2): g.A(f'v_add_f32_dpp v{r}, v{r}, v{r} {mode} {DPPF}')
    red_write(g, [VACC[0]], 0)
    g.A(f's_lshl_b32 s{ST0}, s{SW}, 5\ns_add_u32 s{ST0}, s{ST0}, {L_Q}\nv_lshl_add_u32 v{VT}, v{VKQ}, 3, s{ST0}\nds_write_b64 v{VT}, v[{s1}:{s2}]')
    f0 = cfg.get('A_f0', 6); e0b = cfg.get('A_e0b', 6)
    if f0 <= e0b:
        emit(f0, cfg.get('A_w1', 4)); hint_set(g, 0, 5, True)
    emit(e0b, cfg.get('A_w1', 4))
    g.A(f's_lshl_b32 s{ST2}, s{SU}, 10\ns_add_u32 s{ST2}, s{ST2}, s{SLOC}')
    barrier(g)
    publish(g, 0, 1, ST2, True); g.stamp(2)
    if f0 > e0b:
        emit(f0, cfg.get('A_w1', 4)); hint_set(g, 0, 5, True)
    emit(8, cfg.get('A_w1', 4))
    g.A(f'v_lshrrev_b32 v{VT}, 3, v{VL}\nv_lshlrev_b32 v{VT}, 5, v{VT}\nv_lshl_add_u32 v{VT}, v{VB}, 4, v{VT}\nv_add_u32 v{VT}, {L_Q}, v{VT}\nds_read_b128 v[{VD}:{VD+3}], v{VT}')
    g.A(f's_waitcnt lgkmcnt(0)\nv_add_f32 v{VD}, v{VD}, v{VD+2}\nv_add_f32 v{VD+1}, v{VD+1}, v{VD+3}')
    pair_reduce_s3(g, VD, VD + 2)
    g.A(f'v_mov_b32 v{VD+1}, v{VD}\nv_permlane32_swap_b32 v{VD}, v{VD+1}')
    ln_scalars(g, s1, s2, VD + 2)
    g.A(f'v_lshlrev_b32 v{VLN}, 16, v{VXR}\nv_sub_f32 v{VLN}, v{VLN}, v{s1}')
    rb(g, VLN)
    g.A(f'v_rcp_f32 v{VD+4}, v{s2}\nv_mul_f32 v{VD+5}, v{VLN}, v{VD+4}\nv_fma_f32 v{VD+6}, -v{VD+5}, v{s2}, v{VLN}\nv_fma_f32 v{VLN}, v{VD+6}, v{VD+4}, v{VD+5}')
    rb(g, VLN)
    g.A(f's_lshl_b32 s{ST2}, s{SU}, 4\ns_add_u32 s{ST2}, s{ST2}, s{SXC}\ns_lshl_b32 s{ST2}, s{ST2}, 10\ns_add_u32 s{ST2}, s{ST2}, {QP:#x}')
    acc_off(g, ST2, 8192)
    zero_acc(g, VACC)
    sa, ca = VD, VD + 4
    poll(g, [(sa, 4, VG16, O_MOD, 0), (ca, 4, VG16, O_MOD + 0x2000, 0)], True, 1); g.stamp(3)
    rscatter(g, [sa, ca])
    rb_pair(g, sa, ca, VD + 1)
    g.A(f'v_add_f32 v{ca}, 1.0, v{ca}'); rb(g, ca)
    g.A(f'v_mul_f32 v{ca}, v{ca}, v{VLN}'); rb(g, ca)
    g.A(f'v_add_f32 v{ca}, v{ca}, v{sa}'); xpack(g, VX, ca)
    gemv(g, [VX], [[WQ + 16 * t, WQ + 16 * t + 8] for t in range(2)], VACC)
    red_write(g, VACC, 1)
    barrier(g)
    publish(g, 1, 2, ST2, False, VRRQ); g.stamp(4)
    if cfg.get('stopP2'): finish(g)
    g.A(f's_and_b32 s{ST0}, s{SXC}, 3\ns_lshl_b32 s{ST0}, s{ST0}, 3\ns_lshr_b32 s{ST1}, s{SU}, 1\ns_add_u32 s{ST0}, s{ST0}, s{ST1}\ns_lshl_b32 s{ST0}, s{ST0}, 13')
    g.A(f's_lshr_b32 s{ST1}, s{SXC}, 2\ns_lshl_b32 s{ST1}, s{ST1}, 9\ns_add_u32 s{ST0}, s{ST0}, s{ST1}\ns_and_b32 s{ST1}, s{SU}, 1\ns_lshl_b32 s{ST1}, s{ST1}, 8\ns_add_u32 s{ST0}, s{ST0}, s{ST1}\ns_add_u32 s{ST0}, s{ST0}, {QP:#x}')
    g.A(f'v_lshlrev_b32 v{VGQ}, 10, v{VKQ}\nv_lshl_add_u32 v{VGQ}, v{VN}, 4, v{VGQ}\nv_add_u32 v{VGQ}, s{ST0}, v{VGQ}')
    g.A(f'v_lshlrev_b32 v{VQS}, 4, v{VN}\nv_lshl_add_u32 v{VQS}, v{VKQ}, 2, v{VQS}')
    g.A(f's_lshr_b32 s{ST2}, s{SU}, 2\ns_lshl_b32 s{ST2}, s{ST2}, 10\ns_and_b32 s{ST1}, s{SW}, 1\ns_lshl_b32 s{ST1}, s{ST1}, 9\ns_add_u32 s{ST2}, s{ST2}, s{ST1}')
    g.A(f's_and_b32 s{ST1}, s{SU}, 3\ns_lshl_b32 s{ST1}, s{ST1}, 5\ns_add_u32 s{ST2}, s{ST2}, s{ST1}\ns_lshr_b32 s{ST1}, s{SW}, 1\ns_lshl_b32 s{ST1}, s{ST1}, 3\ns_add_u32 s{ST2}, s{ST2}, s{ST1}\ns_lshl_b32 s{ST1}, s{SXC}, 8')
    kf_const(g, VD + 8, 7)
    tile_addr(g, VAO, ST2, 2048, ST1, VD + 8)
    g.A(f's_cmp_lg_u32 s{SW}, 0\ns_cbranch_scc1 L_A_norelay')
    g.A(f's_lshl_b32 s{ST2}, s{SU}, 8\ns_add_u32 s{ST2}, s{ST2}, s{SLOC}\ns_add_u32 s{ST2}, s{ST2}, {O_QL:#x}\ns_mov_b32 s{ST3}, 0x1000')
    g.sleep('d2', 6)
    poll(g, [(VD, 4, VGQ, None, 0), (VD + 4, 4, VGQ, ST3, 0)], False, cfg.get('r2', 4))
    for i in range(4): g.A(f'v_add_f32 v{VD+i}, v{VD+i}, v{VD+4+i}')
    rscatter(g, [VD], ror=False)
    g.A(f'v_and_or_b32 v{VD}, v{VD}, s{SMASK}, v{VTAG}')
    store1(g, VD, VQS, ST2, True)
    g.A('L_A_norelay:')
    g.stamp(5)
    g.vm = []
    g.A(f's_mul_i32 s{ST2}, s{SU}, 224\ns_min_u32 s{ST1}, s{SW}, 6\ns_lshl_b32 s{ST1}, s{ST1}, 5\ns_add_u32 s{ST2}, s{ST2}, s{ST1}\ns_lshl_b32 s{ST1}, s{SXC}, 8')
    tile_addr(g, VA2, ST2, 2048, ST1)
    g.A(f's_lshr_b32 s{ST1}, s{SU}, 2\ns_lshl_b32 s{ST2}, s{ST1}, 17\ns_and_b32 s{ST0}, s{SU}, 3\ns_lshl_b32 s{ST0}, s{ST0}, 11\ns_add_u32 s{ST2}, s{ST2}, s{ST0}')
    g.A(f's_lshr_b32 s{ST0}, s{SW}, 1\ns_lshl_b32 s{ST0}, s{ST0}, 9\ns_add_u32 s{ST2}, s{ST2}, s{ST0}\ns_and_b32 s{ST0}, s{SW}, 1\ns_lshl_b32 s{ST3}, s{ST0}, 7\ns_add_u32 s{ST2}, s{ST2}, s{ST3}\ns_add_u32 s{ST2}, s{ST2}, {OP:#x}')
    g.A(f'v_lshrrev_b32 v{VD}, 3, v{VL}\nv_and_b32 v{VD+1}, 7, v{VL}')
    g.A(f'v_lshlrev_b32 v{VGO}, 13, v{VD}\nv_lshl_add_u32 v{VGO}, v{VD+1}, 4, v{VGO}\nv_add_u32 v{VGO}, s{ST2}, v{VGO}')
    g.A(f's_lshl_b32 s{ST2}, s{ST1}, 11\ns_lshl_b32 s{ST3}, s{ST0}, 6\ns_add_u32 s{ST2}, s{ST2}, s{ST3}\ns_add_u32 s{ST2}, s{ST2}, {MLP:#x}')
    g.A(f'v_lshlrev_b32 v{VGM}, 7, v{VD}\nv_lshl_add_u32 v{VGM}, v{VD+1}, 3, v{VGM}\nv_add_u32 v{VGM}, s{ST2}, v{VGM}')
    g.A(f's_mul_i32 s{ST0}, s{SU}, 224\ns_min_u32 s{ST1}, s{SW}, 6\ns_lshl_b32 s{ST1}, s{ST1}, 5\ns_add_u32 s{ST0}, s{ST0}, s{ST1}\ns_lshr_b32 s{ST1}, s{ST0}, 7\ns_and_b32 s{ST0}, s{ST0}, 127')
    g.A(f's_lshl_b32 s{ST2}, s{ST1}, 13\ns_lshl_b32 s{ST0}, s{ST0}, 3\ns_add_u32 s{ST2}, s{ST2}, s{ST0}\ns_add_u32 s{ST2}, s{ST2}, {HIDP:#x}')
    g.A(f'v_lshlrev_b32 v{VGH}, 10, v{VD}\nv_lshl_add_u32 v{VGH}, v{VD+1}, 4, v{VGH}\nv_add_u32 v{VGH}, s{ST2}, v{VGH}')
    zero_acc(g, VACC)
    hint_wait(g, 1, 1, 0, True); g.stamp(13)
    emit(cfg.get('A_e3', 16), cfg.get('A_w2', 4))
    g.A(f's_lshl_b32 s{ST2}, s{SU}, 10\ns_add_u32 s{ST2}, s{ST2}, s{SLOC}\ns_add_u32 s{ST2}, s{ST2}, {O_AT:#x}\ns_mov_b32 s{ST3}, 0x10000')
    hint_wait(g, 0, 16, 7); g.stamp(11)
    g.sleep('d3', 4)
    O0, O1, ML = VD, VD + 8, VD + 16
    M, F = VD + 20, VD + 22
    def ml_math():
        g.A(f'v_max_f32 v{M}, v{ML}, v{ML+2}\nv_max_f32_dpp v{M}, v{M}, v{M} row_ror:8 {DPPF}')
        allreduce_kq(g, [M], [M + 1], 'max')
        g.A(f'v_sub_f32 v{F}, v{ML}, v{M}\nv_sub_f32 v{F+2}, v{ML+2}, v{M}\nv_exp_f32 v{F}, v{F}\nv_exp_f32 v{F+2}, v{F+2}')
        g.A(f'v_mul_f32 v{M}, v{F}, v{ML+1}\nv_fmac_f32 v{M}, v{F+2}, v{ML+3}')
        g.A(f'v_add_f32_dpp v{M}, v{M}, v{M} row_ror:8 {DPPF}')
        allreduce_kq(g, [M], [M + 1])
        g.A(f'v_rcp_f32 v{M}, v{M}\nv_mul_f32 v{F}, v{F}, v{M}\nv_mul_f32 v{F+2}, v{F+2}, v{M}')
    def scale(dst, src, f, first):
        for i in (0, 2):
            if first: g.A(f'v_pk_mul_f32 v[{dst+i}:{dst+i+1}], v[{src+i}:{src+i+1}], v[{f}:{f+1}] op_sel_hi:[1,0]')
            else: g.A(f'v_pk_fma_f32 v[{dst+i}:{dst+i+1}], v[{src+i}:{src+i+1}], v[{f}:{f+1}], v[{dst+i}:{dst+i+1}] op_sel_hi:[1,0,1]')
    poll(g, [(ML, 2, VGM, None, 0), (ML + 2, 2, VGM, None, 1024), (O0, 4, VGO, None, 0), (O0 + 4, 4, VGO, None, 256),
             (O1, 4, VGO, ST3, 0), (O1 + 4, 4, VGO, ST3, 256)], False, cfg.get('r3', 4),
         mid={1: ml_math, 2: lambda: scale(O0, O0, F, True), 3: lambda: scale(O0 + 4, O0 + 4, F, True), 4: lambda: scale(O0, O1, F + 2, False)}); g.stamp(6)
    scale(O0 + 4, O1 + 4, F + 2, False)
    rscatter(g, [O0, O0 + 4])
    xpack(g, VX, O0); xpack(g, VX + 1, O0 + 4)
    gemv(g, [VX, VX + 1], [[WO + 8 * i] for i in range(4)], [VACC[0]])
    emit(cfg.get('A_e4', 16), 0)
    red_write(g, [VACC[0]], 3)
    barrier(g)
    publish(g, 3, 1, ST2, True); g.stamp(7)
    g.A(f's_lshl_b32 s{ST2}, s{SU}, 10\ns_add_u32 s{ST2}, s{ST2}, s{SLOC}\ns_add_u32 s{ST2}, s{ST2}, {O_OUT:#x}')
    if cfg.get('A_w2wait', 1): hint_wait(g, 2, 1, 7, True)
    g.A(f's_cmp_eq_u32 s{SW}, 7\ns_cbranch_scc1 L_A_w2skip')
    emit(24, cfg.get('A_w3', 4))
    g.A('L_A_w2skip:')
    AV = VD
    hint_wait(g, 1, 14, 7); g.stamp(8)
    g.A(f's_cmp_eq_u32 s{SW}, 7\ns_cbranch_scc1 L_A_p6skip')
    g.sleep('d5', 4)
    poll(g, [(AV, 4, VGH, None, 0), (AV + 4, 4, VGH, None, 128)], False, cfg.get('r5', 4)); g.stamp(9)
    rscatter(g, [AV, AV + 4])
    g.A(f'v_max_f32 v{AV}, 0, v{AV}\nv_max_f32 v{AV+4}, 0, v{AV+4}')
    xpack(g, VX, AV); xpack(g, VX + 1, AV + 4)
    gemv(g, [VX, VX + 1], [[W2 + 8 * i] for i in range(4)], [VACC[1]])
    g.A('L_A_p6skip:')
    red_write(g, [VACC[1]], 4)
    barrier(g)
    publish(g, 4, 1, ST2, True); g.stamp(10)
    finish(g)

def prog_B(g, head):
    cfg = g.cfg
    KF, VFR, PF, W1B, W1 = 80, 112, 144, 160, 192
    VAK = [224, 225, 226, 227]; VAV = [228, 229]
    VA1B, VA5 = 230, 231
    VC, VXR = 232, 233
    VQG, VQW, VQR, VVR, VMX, VMW, VPW, VPR, VOS, VH2 = 240, 241, 242, 243, 244, 245, 246, 247, 248, 249
    ACC2 = [72, 76]
    def dma(name, i, srdn, lbase, va, win):
        g.window(win)
        if i % 4 == 0:
            g.A(f's_lshl_b32 s{ST0}, s{SW}, 13\ns_add_u32 m0, s{ST0}, {lbase + (i//4)*4096}')
        o = f' offset:{(i%4)*1024}' if i % 4 else ''
        g.A(f'buffer_load_dwordx4 v{va}, s[{srdn}:{srdn+3}], s{SK0 if i < 4 else SK1} offen{o} nt lds'); g.issued(name)
    k_l = [lambda win, i=i: dma('k', i, S_K, L_K, VAK[i % 4], win) for i in range(8)]
    v_l = [lambda win, i=i: dma('v%d' % (i // 4), i, S_V, L_V, VAV[i % 2], win) for i in range(8)]
    p1b_l = [lambda win, t=t, h=h, c=c: wload(g, 'p1b', W1B + 16 * t + 8 * c + 4 * h, VA1B, S_MOD, (8 * t + 2 * h) * 12288 + c * 4096, 0, win) for t in range(2) for h in range(2) for c in range(2)]
    w1_l = [lambda win, t=t, h=h, c=c: wload(g, 'w1', W1 + 16 * t + 8 * c + 4 * h, VA5, S_W1, (8 * t + 2 * h) * 7168, c * 256, win) for t in range(2) for h in range(2) for c in range(2)]
    seq = k_l + v_l + p1b_l + w1_l
    pos = [0]
    def emit(upto, win):
        while pos[0] < min(upto, len(seq)): seq[pos[0]](win); pos[0] += 1
    nhead = cfg.get('B_eh', 1)
    if head:
        g.A(f's_load_dwordx2 s[{S_K}:{S_K+1}], s[0:1], 8\ns_load_dwordx2 s[{S_V}:{S_V+1}], s[0:1], 16\ns_load_dwordx2 s[{S_W1}:{S_W1+1}], s[0:1], 48')
        code_prefetch(g)
        if cfg.get('onlyA'): g.A('s_endpgm')
        g.A(f's_lshl_b32 s{SK0}, s{SXC}, 23\ns_lshl_b32 s{ST1}, s{SU}, 16\ns_add_u32 s{SK0}, s{SK0}, s{ST1}\ns_lshl_b32 s{ST1}, s{SW}, 13\ns_add_u32 s{SK0}, s{SK0}, s{ST1}\ns_add_u32 s{SK0}, s{SK0}, {28672*256:#x}')
        g.A(f'v_xor_b32 v{VT}, v{VN}, v{VKQ}\nv_lshlrev_b32 v{VT}, 4, v{VT}\nv_lshl_add_u32 v{VAK[0]}, v{VKQ}, 8, v{VT}')
        for i in range(1, 4): g.A(f'v_xor_b32 v{VAK[i]}, {64*i}, v{VAK[0]}')
        srdc(g, S_K, 0x4000000)
        g.A('s_waitcnt lgkmcnt(0)')
        g.A(f's_load_dword s{STAG}, s[{S_WS}:{S_WS+1}], 0\ns_load_dwordx2 s[{S_OUT}:{S_OUT+1}], s[0:1], 80')
        emit(nhead, 0)
        g.A('s_branch L_progB')
        return
    pos[0] = nhead
    zero_stamps(g); g.stamp(12)
    g.A(f's_add_u32 s{SK1}, s{SK0}, 4096')
    g.A(f'v_lshlrev_b32 v{VT}, 1, v{VKQ}\nv_xor_b32 v{VT}, v{VN}, v{VT}\nv_lshlrev_b32 v{VT}, 4, v{VT}\nv_lshl_add_u32 v{VAV[0]}, v{VKQ}, 8, v{VT}\nv_xor_b32 v{VAV[1]}, 128, v{VAV[0]}')
    srdc(g, S_V, 0x4000000)
    srdc(g, S_MOD, 1024 * 6144 * 2); srdc(g, S_CC, 4096); srdc(g, S_X, 4096)
    late_consts(g, 'B')
    ve_const(g); kf_const(g)
    load_c(g, VC)
    load_xr(g, VXR)
    if cfg.get('prewarm', 1):
        g.A(f's_cmp_lg_u32 s{SW}, 7\ns_cbranch_scc1 L_B_nowarm')
        g.A(f's_lshl_b32 s{ST0}, s{SU}, 13\ns_add_u32 s{ST0}, s{ST0}, s{SLOC}\nv_lshlrev_b32 v{VT}, 7, v{VL}\nbuffer_load_dword v251, v{VT}, s[{S_WS}:{S_WS+3}], s{ST0} offen sc1')
        g.A('L_B_nowarm:')
    lane_consts(g, False)
    p1_addr(g, VA1B, 16)
    g.A(f's_lshl_b32 s{ST2}, s{SXC}, 7\ns_lshl_b32 s{ST1}, s{SW}, 4\ns_add_u32 s{ST2}, s{ST2}, s{ST1}\ns_min_u32 s{ST1}, s{SU}, 13\ns_lshl_b32 s{ST1}, s{ST1}, 9')
    tile_addr(g, VA5, ST2, 7168, ST1)
    g.A(f's_lshl_b32 s{ST0}, s{SW}, 9\nv_lshl_add_u32 v{VQG}, v{VL}, 3, s{ST0}\nv_lshlrev_b32 v{VH2}, 2, v0')
    g.A(f's_mul_i32 s{ST0}, s{SW}, 272\ns_add_u32 s{ST0}, s{ST0}, {L_Q}\nv_lshl_add_u32 v{VQW}, v{VL}, 2, s{ST0}')
    g.A(f'v_and_b32 v{VD}, 7, v{VL}\nv_mul_u32_u24 v{VQR}, 272, v{VD}\nv_lshl_add_u32 v{VQR}, v{VKQ}, 4, v{VQR}\nv_add_u32 v{VQR}, {L_Q}, v{VQR}')
    g.A(f'v_lshlrev_b32 v{VMX}, 5, v{VD}\nv_add_u32 v{VMX}, {L_MAX}, v{VMX}\ns_lshl_b32 s{ST0}, s{SW}, 2\nv_add_u32 v{VMW}, s{ST0}, v{VMX}')
    g.A(f'v_lshlrev_b32 v{VD+1}, 4, v{VD}\nv_lshl_add_u32 v{VD+1}, v{VKQ}, 7, v{VD+1}\nv_add_u32 v{VD+1}, {L_PX}, v{VD+1}\nv_bfe_u32 v{VD+2}, v{VL}, 3, 1')
    g.A(f'v_lshl_add_u32 v{VPR}, v{VD+2}, 11, v{VD+1}\ns_lshl_b32 s{ST0}, s{SW}, 9\nv_lshl_add_u32 v{VPW}, v{VD+2}, 3, v{VD+1}\nv_add_u32 v{VPW}, s{ST0}, v{VPW}')
    g.A(f'v_lshrrev_b32 v{VT}, 2, v{VL}')
    g.A(f'v_and_b32 v{VD+4}, 7, v{VT}\nv_lshlrev_b32 v{VD+4}, 1, v{VD+4}\nv_bfe_u32 v{VD+5}, v{VL}, 1, 1\ns_lshl_b32 s{ST0}, s{SW}, 1\nv_add_u32 v{VD+5}, s{ST0}, v{VD+5}\nv_xor_b32 v{VD+4}, v{VD+4}, v{VD+5}')
    g.A(f'v_lshlrev_b32 v{VVR}, 8, v{VT}\nv_lshl_add_u32 v{VVR}, v{VD+4}, 4, v{VVR}\nv_and_b32 v{VD+5}, 1, v{VL}\nv_lshl_add_u32 v{VVR}, v{VD+5}, 3, v{VVR}\nv_add_u32 v{VVR}, {L_V}, v{VVR}')
    g.A(f'v_and_b32 v{VOS}, 3, v{VL}\nv_lshlrev_b32 v{VOS}, 4, v{VOS}\nv_lshl_add_u32 v{VOS}, v{VB}, 7, v{VOS}\nv_lshl_add_u32 v{VOS}, v{VKQ}, 8, v{VOS}')
    a0 = 236
    g.A(f'v_xor_b32 v{VT}, v{VN}, v{VKQ}\nv_lshlrev_b32 v{VT}, 4, v{VT}\nv_lshl_add_u32 v{a0}, v{VN}, 8, v{VT}\ns_lshl_b32 s{ST0}, s{SW}, 13\nv_add_u32 v{a0}, s{ST0}, v{a0}')
    for i in range(1, 4): g.A(f'v_xor_b32 v{a0+i}, {64*i}, v{a0}')
    zero_acc(g, ACC2)
    g.A(f's_and_b32 s{ST2}, s{SXC}, 3\ns_lshl_b32 s{ST2}, s{ST2}, 4\ns_add_u32 s{ST2}, s{ST2}, s{SU}\ns_lshr_b32 s{ST1}, s{SXC}, 2')
    g.A(f's_lshl_b32 s{ST3}, s{ST2}, 7\ns_lshl_b32 s{ST0}, s{ST1}, 5\ns_add_u32 s{ST3}, s{ST3}, s{ST0}\ns_add_u32 s{ST3}, s{ST3}, {MLP:#x}')
    g.A(f's_lshl_b32 s{ST2}, s{ST2}, 13\ns_lshl_b32 s{ST0}, s{SW}, 10\ns_add_u32 s{ST2}, s{ST2}, s{ST0}\ns_lshl_b32 s{ST0}, s{ST1}, 6\ns_add_u32 s{ST2}, s{ST2}, s{ST0}\ns_add_u32 s{ST2}, s{ST2}, {OP:#x}')
    g.A(f's_mov_b32 s{ST1}, {LOG2E:#x}')
    g.stamp(13)
    if cfg.get('pure'):
        W = cfg['pure']
        emit(12, W); g.stamp(1); emit(20, W); g.stamp(11); emit(28, W); g.stamp(4); emit(32, W); g.A('s_waitcnt vmcnt(0)'); g.stamp(5)
        finish(g)
    emit(cfg.get('B_e1', 2), cfg.get('B_w0', 1))
    g.wait('xr')
    silu(g, VC)
    hint_wait(g, 0, 1, 0, True); g.stamp(6)
    emit(12, cfg.get('B_w1', 4))
    g.wait('k'); g.stamp(1)
    for t in range(2):
        for i in range(4):
            r = KF + 16 * t + 4 * i
            g.A(f'ds_read_b128 v[{r}:{r+3}], v{a0+i} offset:{L_K + t*4096}')
    trs = [(s, t) for t in range(2) for s in range(8)]
    def tr_reads(lst):
        for s, t in lst:
            r = VFR + 4 * s + 2 * t
            g.A(f'ds_read_b64_tr_b16 v[{r}:{r+1}], v{VVR} offset:{s*8192 + t*4096}')
    qpos = cfg.get('B_qpos', 12); f1 = cfg.get('B_f1', 14)
    def emit_f(upto, win):
        if pos[0] < f1 <= upto:
            emit(f1, win); hint_set(g, 1, 5, True)
        emit(upto, win)
    emit_f(qpos, cfg.get('B_w1', 4))
    g.A(f's_add_u32 s{SP0}, s{SLOC}, {O_QL:#x}\nbuffer_load_dwordx2 v[{VD}:{VD+1}], v{VQG}, s[{S_WS}:{S_WS+3}], s{SP0} offen sc1'); g.issued('qg')
    emit_f(16, cfg.get('B_w1', 4) + 1)
    g.wait('qg')
    vm_fast = list(g.vm)
    g.A(f'v_xor_b32 v{VT}, v{VD}, v{VTAG}\nv_bitop3_b32 v{VT}, v{VT}, v{VD+1}, v{VTAG} bitop3:0xf6\nv_and_b32 v{VT}, 0xff, v{VT}\nv_cmp_ne_u32 vcc, 0, v{VT}\ns_cbranch_vccz L_B_qok')
    poll(g, [(VD, 2, VQG, O_QL, 0)], True, 1)
    g.A('L_B_qok:')
    g.vm = vm_fast
    g.stamp(2)
    g.A(f'v_cvt_pk_bf16_f32 v{VD}, v{VD}, v{VD+1}\nds_write_b32 v{VQW}, v{VD}')
    barrier(g)
    QF = VD
    for i in range(4): g.A(f'ds_read_b128 v[{QF+4*i}:{QF+4*i+3}], v{VQR} offset:{64*i}')
    emit(pos[0] + cfg.get('B_n3a', 2), 0)
    S = VD + 16
    for i in range(4):
        g.A(f's_waitcnt lgkmcnt({3 - i})')
        for t in range(2):
            acc = S + 4 * t; k = KF + 16 * t + 4 * i
            cin = '0' if i == 0 else f'v[{acc}:{acc+3}]'
            g.A(f'v_mfma_f32_16x16x32_bf16 v[{acc}:{acc+3}], v[{k}:{k+3}], v[{QF+4*i}:{QF+4*i+3}], {cin}')
    for i in range(4): g.A(f'v_mov_b32_dpp v{S+i}, v{S+4+i} quad_perm:[0,1,2,3] row_mask:0xf bank_mask:0xc')
    sr = [S + i for i in range(4)]
    tm = [VD + 24, VD + 25]
    if cfg.get('mimic', 1):
        rb_list(g, sr, tm)
        for r in sr: g.A(f'v_mul_f32 v{r}, {SCALE:#x}, v{r}')
        rb_list(g, sr, tm)
    else:
        for r in sr: g.A(f'v_mul_f32 v{r}, {SCALE:#x}, v{r}')
    m = VD + 28
    g.A(f'v_max3_f32 v{m}, v{S}, v{S+1}, v{S+2}\nv_max_f32 v{m}, v{m}, v{S+3}\nv_max_f32_dpp v{m}, v{m}, v{m} row_ror:8 {DPPF}')
    allreduce_kq(g, [m], [m + 1], 'max')
    g.A(f's_mov_b64 exec, 0xff\nds_write_b32 v{VMW}, v{m}\ns_mov_b64 exec, -1')
    g.wait('v0')
    barrier(g)
    g.A(f'ds_read_b128 v[{VD}:{VD+3}], v{VMX}\nds_read_b128 v[{VD+4}:{VD+7}], v{VMX} offset:16')
    emit(pos[0] + cfg.get('B_n3b', 1), 0)
    tr_reads(trs[:8]); g.A('s_waitcnt lgkmcnt(8)')
    g.A(f'v_max3_f32 v{m}, v{VD}, v{VD+1}, v{VD+2}\nv_max3_f32 v{m+1}, v{VD+3}, v{VD+4}, v{VD+5}\nv_max3_f32 v{m}, v{m}, v{VD+6}, v{VD+7}\nv_max_f32 v{m}, v{m}, v{m+1}')
    g.A(f'v_mul_f32 v{m}, s{ST1}, v{m}\nv_and_or_b32 v{m}, v{m}, s{SMASK}, v{VTAG}')
    for r in sr: g.A(f'v_fma_f32 v{r}, v{r}, s{ST1}, -v{m}')
    for r in sr: g.A(f'v_exp_f32 v{r}, v{r}')
    g.A(f'v_cvt_pk_bf16_f32 v{tm[0]}, v{S}, v{S+1}\nv_cvt_pk_bf16_f32 v{tm[1]}, v{S+2}, v{S+3}')
    g.A(f'ds_write_b64 v{VPW}, v[{tm[0]}:{tm[1]}]')
    g.A(f'v_add_f32 v{S}, v{S}, v{S+1}\nv_add_f32 v{S+2}, v{S+2}, v{S+3}\nv_add_f32 v{S}, v{S}, v{S+2}\nv_add_f32_dpp v{S}, v{S}, v{S} row_ror:8 {DPPF}')
    allreduce_kq(g, [S], [S + 1])
    g.A(f's_mov_b64 exec, 0xff\nds_write_b32 v{VMW}, v{S} offset:256\ns_mov_b64 exec, -1')
    g.wait('v1'); g.stamp(11)
    barrier(g)
    for s in range(4):
        g.A(f'ds_read_b128 v[{PF+4*s}:{PF+4*s+3}], v{VPR} offset:{s*512}')
        tr_reads([(s, 1), (s + 4, 1)])
    if cfg.get('h3early', 1): hint_set(g, 0, 6)
    lo, hi = VACC
    for s in range(4):
        g.A(f's_waitcnt lgkmcnt({9 - 3*s})')
        for acc, sv in ((lo, s), (hi, s + 4)):
            cin = '0' if s == 0 else f'v[{acc}:{acc+3}]'
            g.A(f'v_mfma_f32_16x16x32_bf16 v[{acc}:{acc+3}], v[{VFR+4*sv}:{VFR+4*sv+3}], v[{PF+4*s}:{PF+4*s+3}], {cin}')
    g.A(f's_cmp_lg_u32 s{SW}, 7\ns_cbranch_scc1 L_B_noml')
    g.A(f'ds_read_b128 v[{VD}:{VD+3}], v{VMX} offset:256\nds_read_b128 v[{VD+4}:{VD+7}], v{VMX} offset:272\ns_waitcnt lgkmcnt(0)')
    g.A(f'v_add_f32 v{VD}, v{VD}, v{VD+1}\nv_add_f32 v{VD+2}, v{VD+2}, v{VD+3}\nv_add_f32 v{VD+4}, v{VD+4}, v{VD+5}\nv_add_f32 v{VD+6}, v{VD+6}, v{VD+7}')
    g.A(f'v_add_f32 v{VD}, v{VD}, v{VD+2}\nv_add_f32 v{VD+4}, v{VD+4}, v{VD+6}\nv_add_f32 v{m+1}, v{VD}, v{VD+4}')
    g.A(f'v_and_or_b32 v{m+1}, v{m+1}, s{SMASK}, v{VTAG}\nv_lshrrev_b32 v{VT}, 1, v{VOS}')
    g.A(f's_mov_b64 exec, 0xff\nbuffer_store_dwordx2 v[{m}:{m+1}], v{VT}, s[{S_WS}:{S_WS+3}], s{ST3} offen sc1\ns_mov_b64 exec, -1')
    g.A('L_B_noml:')
    g.A('s_nop 5')
    for i in range(4): g.A(f'v_add_f32_dpp v{lo+i}, v{hi+i}, v{lo+i} row_ror:8 {DPPF}')
    g.A(f's_mov_b32 exec_lo, 0x00ff00ff\ns_mov_b32 exec_hi, 0x00ff00ff')
    g.A(f'v_and_or_b32 v{lo}, v{lo}, s{SMASK}, v{VTAG}\nv_and_or_b32 v{lo+3}, v{lo+3}, s{SMASK}, v{VTAG}')
    g.A(f'buffer_store_dwordx4 v[{lo}:{lo+3}], v{VOS}, s[{S_WS}:{S_WS+3}], s{ST2} offen sc1'); g.issued('st')
    g.A('s_mov_b64 exec, -1')
    if not cfg.get('h3early', 1): hint_set(g, 0, 6)
    g.stamp(3)
    def p1b_compute():
        g.wait('p1b')
        gemv(g, [VS], [[W1B + 16 * t, W1B + 16 * t + 8] for t in range(2)], ACC2)
        g.A(f's_lshl_b32 s{ST2}, s{SU}, 10\ns_add_u32 s{ST2}, s{ST2}, s{SLOC}\ns_add_u32 s{ST2}, s{ST2}, {O_MOD + 0x4000:#x}')
        acc_off(g, ST2, 0x4000)
        red_write(g, ACC2, 0)
    def p1b_publish():
        barrier(g)
        publish(g, 0, 2, ST2, True); g.stamp(4)
    emit(24, cfg.get('B_w2', 4))
    g.A(f's_cmp_ge_u32 s{SU}, 14\ns_cbranch_scc1 L_B_spare')
    vm_save = list(g.vm)
    emit(cfg.get('B_e4', 28), cfg.get('B_w2', 4))
    p1b_compute()
    emit(cfg.get('B_e5', 28), cfg.get('B_w2', 4))
    p1b_publish()
    f2 = cfg.get('B_f2', 30)
    emit(f2, cfg.get('B_w3', 4)); hint_set(g, 2, 5, True)
    emit(32, cfg.get('B_w3', 4))
    g.A(f's_lshl_b32 s{ST2}, s{SU}, 4\ns_add_u32 s{ST2}, s{ST2}, s{SXC}\ns_lshl_b32 s{ST2}, s{ST2}, 10\ns_add_u32 s{ST2}, s{ST2}, {HIDP:#x}')
    acc_off(g, ST2, 8192)
    zero_acc(g, VACC)
    if cfg.get('prof'): g.wait('w1'); g.stamp(5)
    poll(g, [(VX, 1, VH2, O_H2, 0)], True, cfg.get('sl_h2', 2)); g.stamp(7)
    g.A(f'v_lshrrev_b32 v{VX}, 16, v{VX}')
    gemv(g, [VX], [[W1 + 16 * t, W1 + 16 * t + 8] for t in range(2)], VACC)
    red_write(g, VACC, 2)
    barrier(g)
    if cfg.get('h5early', 1): hint_set(g, 1, 6)
    publish(g, 2, 2, ST2, False)
    if not cfg.get('h5early', 1): hint_set(g, 1, 6)
    g.stamp(8)
    finish(g)
    g.A('L_B_spare:')
    g.vm = vm_save
    hint_set(g, 2, 5, True)
    p1b_compute(); p1b_publish()
    g.A(f's_cmp_lg_u32 s{SU}, 14\ns_cbranch_scc1 L_B_done')
    GA, SB, CB, GB, X2 = 80, 84, 88, 92, 96
    VST, VSR, VSS, VSG = 100, 101, 102, 103
    g.A(f'v_lshlrev_b32 v{X2}, 16, v{VXR}')
    g.A(f's_lshl_b32 s{ST0}, s{SW}, 3\ns_add_u32 s{ST0}, s{ST0}, {L_STAT}\nv_lshl_add_u32 v{VST}, v{VB}, 6, s{ST0}\nv_lshrrev_b32 v{VD}, 5, v{VL}\nv_lshl_add_u32 v{VST}, v{VD}, 2, v{VST}')
    g.A(f'v_and_b32 v{VSR}, 0x38, v{VL}\nv_lshl_add_u32 v{VSR}, v{VB}, 6, v{VSR}\nv_add_u32 v{VSR}, {L_STAT}, v{VSR}')
    g.A(f'v_bfe_u32 v{VSS}, v{VL}, 3, 2\nv_and_b32 v{VT}, 1, v{VL}\nv_lshl_add_u32 v{VSS}, v{VT}, 2, v{VSS}\nv_lshlrev_b32 v{VSS}, 10, v{VSS}\nv_lshl_add_u32 v{VSS}, v{VB}, 3, v{VSS}\nv_lshl_add_u32 v{VSS}, v{VD}, 2, v{VSS}')
    g.A(f'v_lshrrev_b32 v{VSG}, 3, v{VL}\nv_lshlrev_b32 v{VSG}, 7, v{VSG}\nv_lshl_add_u32 v{VSG}, v{VB}, 3, v{VSG}')
    g.A(f's_lshl_b32 s{ST2}, s{SXC}, 7\ns_add_u32 s{ST2}, s{ST2}, {STP:#x}\ns_lshl_b32 s{ST3}, s{SXC}, 10\ns_add_u32 s{ST3}, s{ST3}, {STP:#x}\ns_add_u32 s{SH}, s{SLOC}, {O_H2:#x}')
    g.A(f's_lshl_b32 s{ST1}, s{SXC}, 8\ns_lshl_b32 s{ST0}, s{SW}, 5\ns_add_u32 s{ST1}, s{ST1}, s{ST0}')
    poll(g, [(GA + 4 * k, 4, VG16, O_MOD + 0x4000 + 0x2000 * k, 0) for k in range(4)], True, 1); g.stamp(5)
    rscatter(g, [GA, SB, CB, GB])
    rb_pair(g, GA, CB, VD); rb_pair(g, SB, GB, VD + 1)
    g.A(f'v_add_f32 v{CB}, 1.0, v{CB}'); rb(g, CB)
    poll(g, [(VD, 4, VG16, O_AT, 0), (VD + 4, 4, VG16, O_AT + 0x2000, 0)], True, 0); g.stamp(6)
    for i in range(4): g.A(f'v_add_f32 v{VD+i}, v{VD+i}, v{VD+4+i}')
    rscatter(g, [VD])
    rb(g, VD)
    g.A(f'v_mul_f32 v{VD}, v{VD}, v{GA}'); rb(g, VD)
    g.A(f'v_add_f32 v{X2}, v{X2}, v{VD}'); rb(g, X2)
    g.A(f'v_mov_b32 v{VD}, v{X2}\nv_mul_f32 v{VD+1}, v{X2}, v{X2}')
    g.A(f'v_permlane32_swap_b32 v{VD}, v{VD+1}\nv_add_f32 v{VD}, v{VD}, v{VD+1}\nv_mov_b32 v{VD+1}, v{VD}\nv_permlane16_swap_b32 v{VD}, v{VD+1}\nv_add_f32 v{VD}, v{VD}, v{VD+1}')
    for mode in ['quad_perm:[1,0,3,2]', 'quad_perm:[2,3,0,1]']:
        g.A(f'v_add_f32_dpp v{VD}, v{VD}, v{VD} {mode} {DPPF}')
    g.A(f's_mov_b32 exec_lo, 0x11\ns_mov_b32 exec_hi, 0x11\nds_write_b32 v{VST}, v{VD}\ns_mov_b64 exec, -1')
    barrier(g)
    g.A(f's_cmp_lg_u32 s{SW}, 0\ns_cbranch_scc1 L_B_nostat')
    g.A(f'ds_read_b64 v[{VD+8}:{VD+9}], v{VSR}\ns_waitcnt lgkmcnt(0)')
    pair_reduce_s3(g, VD + 8, VD + 10)
    g.A(f'v_and_or_b32 v{VD+8}, v{VD+8}, s{SMASK}, v{VTAG}')
    g.A(f's_mov_b32 exec_lo, 0x33333333\ns_mov_b32 exec_hi, 0x33333333\nbuffer_store_dword v{VD+8}, v{VSS}, s[{S_WS}:{S_WS+3}], s{ST2} offen sc1\ns_mov_b64 exec, -1')
    g.A('L_B_nostat:')
    g.stamp(7)
    g.sleep('d4', 10)
    SS = VD
    poll(g, [(SS, 2, VSG, ST3, 0)], False, cfg.get('r4', 3)); g.stamp(11)
    pair_reduce_s3(g, SS, SS + 2)
    g.A(f'v_mov_b32 v{SS+1}, v{SS}\nv_permlane32_swap_b32 v{SS}, v{SS+1}')
    ln_scalars(g, SS, SS + 1, SS + 2)
    g.A(f'v_rcp_f32 v{SS+1}, v{SS+1}\nv_sub_f32 v{SS}, v{X2}, v{SS}'); rb(g, SS)
    g.A(f'v_mul_f32 v{SS}, v{SS}, v{SS+1}'); rb(g, SS)
    g.A(f'v_mul_f32 v{SS}, v{SS}, v{CB}'); rb(g, SS)
    g.A(f'v_add_f32 v{SS}, v{SS}, v{SB}\nv_cvt_pk_bf16_f32 v{SS}, 0, v{SS}\nv_or_b32 v{SS}, v{SS}, v{VTAG}')
    store1(g, SS, VH2, SH, True); g.stamp(8)
    poll(g, [(VD, 4, VG16, O_OUT, 0), (VD + 4, 4, VG16, O_OUT + 0x2000, 0)], True, 0); g.stamp(9)
    for i in range(4): g.A(f'v_add_f32 v{VD+i}, v{VD+i}, v{VD+4+i}')
    rscatter(g, [VD])
    rb(g, VD)
    g.A(f'v_mul_f32 v{VD}, v{VD}, v{GB}'); rb(g, VD)
    g.A(f'v_add_f32 v{VD}, v{X2}, v{VD}\nv_cvt_pk_bf16_f32 v{VD}, v{VD}, v{VD}')
    g.A(f's_mov_b32 exec_lo, 0x00ff00ff\ns_mov_b32 exec_hi, 0x00ff00ff')
    g.A(f'buffer_store_short v{VD}, v{VE}, s[{S_OUT}:{S_OUT+3}], s{ST1} offen')
    g.A('s_mov_b64 exec, -1')
    if 'diag' in cfg:
        k = cfg['diag']
        g.stamp(10)
        g.A(f's_add_u32 s{ST2}, s{SST+2*k}, 4000')
        g.A(f'L_diag:\ns_memrealtime s[80:81]\ns_waitcnt lgkmcnt(0)\ns_sub_u32 s{ST3}, s80, s{ST2}\ns_cmp_lt_i32 s{ST3}, 0\ns_cbranch_scc1 L_diag')
    g.A(f's_or_b32 s{ST0}, s{SXC}, s{SW}\ns_cmp_lg_u32 s{ST0}, 0\ns_cbranch_scc1 L_B_done')
    g.A(f's_mov_b64 exec, 1\nbuffer_store_dword v{VEP}, v{VL}, s[{S_WS}:{S_WS+3}], 0 offen sc1\ns_mov_b64 exec, -1')
    g.A('L_B_done:'); g.stamp(10)
    finish(g)

HEAD = open('adaLN_cond__sliding_block_cached__dense_activation_relu__decode.s.ref').read().split('; Override launch')[0]

def generate(cfg):
    g = G(cfg)
    prologue(g)
    vm0 = list(g.vm)
    g.A('s_cmp_lt_u32 s2, 128\ns_cbranch_scc1 L_progA')
    prog_B(g, True); vmB = list(g.vm)
    g.A('L_progA:'); g.vm = list(vm0)
    prog_A(g)
    g.A('L_progB:'); g.vm = vmB
    prog_B(g, False)
    g.A('L_exit:\ns_endpgm')
    body = pad_hazards(g.L)
    out = [HEAD.rstrip(), f'; @launch grid=(256,1,1) block=(512,1,1) lds={LDS_BYTES}',
           '.amdgcn_target "amdgcn-amd-amdhsa--gfx950"', '.text', f'.globl {KNAME}', '.p2align 8', f'.type {KNAME},@function', f'{KNAME}:']
    out += [(l if l.endswith(':') else '    ' + l) for l in body]
    out += ['.section .rodata,"a"', '.p2align 6', f'.amdhsa_kernel {KNAME}', '  .amdhsa_next_free_vgpr 256', '  .amdhsa_next_free_sgpr 102',
            '  .amdhsa_accum_offset 256', '  .amdhsa_group_segment_fixed_size 0', '  .amdhsa_kernarg_size 104', '  .amdhsa_user_sgpr_count 2',
            '  .amdhsa_user_sgpr_kernarg_segment_ptr 1', '  .amdhsa_system_sgpr_workgroup_id_x 1', '  .amdhsa_float_denorm_mode_32 3', '.end_amdhsa_kernel', '']
    return '\n'.join(out)

if __name__ == '__main__':
    cfg = {}
    for a in sys.argv[2:]:
        k, v = a.split('='); cfg[k] = int(v)
    open(sys.argv[1], 'w').write(generate(cfg))
```

```python
import sys
from asmlib import pad_hazards

KNAME = 'adaLN_cond__sliding_block_cached__dense_activation_relu__decode_kernel'

LOC = 0x0C0000; LSTR = 0x50000; YOFF = 0x28000
O_MOD = 0
O_AT = 0xC000
O_OUT = 0x10000
O_QL = 0x14000
O_FLG = 0x15000
O_H2 = 0x15800
O_ML = 0x26000
O_PF = 0x27000
O_OL = 0x16000
QP   = 0x001000
OC   = 0x041000
STP  = 0x049000
HIDP = 0x04B000
PROF = 0x600000
WS_BYTES = 0x800000

RSTR = 1280; RBUF = 8 * RSTR
L_K = 0; L_V = 65536; L_RED = 131072; L_Q = L_RED + RBUF; L_PX = L_Q + 2304; L_MAX = L_PX + 4096
L_SUM = L_MAX + 256; L_STAT = L_SUM + 256; L_END = L_STAT + 128
LDS_BYTES = (L_END + 255) // 256 * 256

LOG2E = 0x3fb8aa3b
NLOG2E = 0xbfb8aa3b
SCALE = 0x3db504f3
SPIN_MAX = 40000
HINT_MAX = 200
DPPF = 'row_mask:0xf bank_mask:0xf'

class G:
    def __init__(self, cfg):
        self.L = []; self.cfg = cfg; self.vm = []; self.nlab = 0; self.nolock = False; self.frozen = set()
    def A(self, s):
        for line in s.split('\n'):
            line = line.strip()
            if line: self.L.append(line)
    def lab(self, p):
        self.nlab += 1; return f'L_{p}_{self.nlab}'
    def issued(self, name): self.vm.append(name)
    def wait(self, name):
        idx = [i for i, n in enumerate(self.vm) if n == name]
        if not idx: return
        n = len(self.vm) - 1 - idx[-1]
        self.A(f's_waitcnt vmcnt({n})'); self.vm = self.vm[idx[-1] + 1:]
    def window(self, win):
        if win and len(self.vm) >= win:
            self.A(f's_waitcnt vmcnt({win-1})'); self.vm = self.vm[len(self.vm) - (win - 1):] if win > 1 else []
            if self.cfg.get('lock') and not self.nolock: self.A('s_barrier')
    def stamp(self, k, fine=False):
        if k in self.frozen and not fine: return
        if fine:
            if not self.cfg.get('fineB'): return
            self.frozen.add(k)
        if self.cfg.get('prof'):
            self.A(f's_memrealtime s[{SST+2*k}:{SST+1+2*k}]')
            self.A('s_waitcnt lgkmcnt(0)')
    def sleep(self, key, default):
        n = self.cfg.get(key, default)
        if n: self.A(f's_sleep {n}')

VL, VKQ, VN, VB, VE = 1, 2, 3, 4, 5
VIDX, VKF = 6, 7
VTAG, VG16, VRA, VRR, VPUB, VT = 10, 11, 12, 13, 14, 15
VF = [16, 20]
VACC = [24, 28]
VD = 32
VS = 64
VX = 66
VRRQ = 68
VFL = 69
VEP = 70
S_WS, S_MOD, S_K, S_V, S_WQ, S_WO, S_W1, S_W2, S_X, S_CC, S_OUT = 4, 8, 12, 16, 20, 24, 28, 32, 36, 40, 44
SST = 48; NST = 14
SP0 = 76
SLOC = 101
SW, SXC, SU, STAG = 84, 85, 86, 87
SK0, SK1 = 88, 89
ST0, ST1, ST2, ST3 = 90, 91, 92, 93
SMASK, SHI, SCNT, SPOLL, SEX = 94, 95, 96, 97, 98
SH = 100
SOB, SMB, SLG = 82, 83, 98

def srdc(g, d, size):
    g.A(f's_mov_b32 s{d+2}, {size:#x}\ns_mov_b32 s{d+3}, 0x20000')

def wload(g, name, dst, vaddr, srdn, soff, imm=0, win=0):
    g.window(win)
    so = '0'
    if soff:
        g.A(f's_mov_b32 s{ST0}, {soff:#x}'); so = f's{ST0}'
    o = f' offset:{imm}' if imm else ''
    g.A(f'buffer_load_dwordx4 v[{dst}:{dst+3}], v{vaddr}, s[{srdn}:{srdn+3}], {so} offen{o} nt')
    g.issued(name)

def rb(g, a):
    g.A(f'v_cvt_pk_bf16_f32 v{a}, v{a}, v{a}\nv_and_b32 v{a}, s{SHI}, v{a}')
def rb_pair(g, a, b, t):
    g.A(f'v_cvt_pk_bf16_f32 v{t}, v{a}, v{b}\nv_lshlrev_b32 v{a}, 16, v{t}\nv_and_b32 v{b}, s{SHI}, v{t}')
def rb_list(g, regs, temps):
    for k in range(0, len(regs), 2): rb_pair(g, regs[k], regs[k+1], temps[(k // 2) % len(temps)])

def rscatter(g, quads, ror=True):
    for X in quads: g.A(f'v_permlane32_swap_b32 v{X}, v{X+2}\nv_permlane32_swap_b32 v{X+1}, v{X+3}')
    for X in quads: g.A(f'v_add_f32 v{X}, v{X}, v{X+2}\nv_add_f32 v{X+1}, v{X+1}, v{X+3}')
    for X in quads: g.A(f'v_permlane16_swap_b32 v{X}, v{X+1}')
    for X in quads: g.A(f'v_add_f32 v{X}, v{X}, v{X+1}')
    if ror:
        for X in quads: g.A(f'v_add_f32_dpp v{X}, v{X}, v{X} row_ror:8 {DPPF}')

def allreduce_kq(g, regs, temps, op='add'):
    for sw in ['v_permlane16_swap_b32', 'v_permlane32_swap_b32']:
        for r, t in zip(regs, temps): g.A(f'v_mov_b32 v{t}, v{r}')
        for r, t in zip(regs, temps): g.A(f'{sw} v{r}, v{t}')
        for r, t in zip(regs, temps): g.A(f'v_{op}_f32 v{r}, v{r}, v{t}')

def zero_acc(g, accs):
    for acc in accs:
        for r in range(4): g.A(f'v_mov_b32 v{acc+r}, 0')

def gemv(g, xs, wregs, accs):
    n = 2 * len(xs)
    def build(i):
        f = VF[i & 1]; t = i & 1
        for r in range(4):
            sq = 2 * t + (r >> 1)
            g.A(f'v_mov_b32_dpp v{f+r}, v{xs[i >> 1]} quad_perm:[{sq},{sq},{sq},{sq}] row_mask:0xf bank_mask:{"0xc" if r & 1 else "0x3"}')
    build(0)
    for i in range(n):
        if i + 1 < n: build(i + 1)
        f = VF[i & 1]
        for c, acc in enumerate(accs):
            w = wregs[i][c]
            g.A(f'v_smfmac_f32_16x16x64_bf16 v[{acc}:{acc+3}], v[{f}:{f+3}], v[{w}:{w+7}], v{VIDX}')

def xpack(g, dst, src):
    g.A(f'v_cvt_pk_bf16_f32 v{dst}, v{src}, 0')

def red_write(g, accs, slot):
    if slot == 'R':
        g.A(f'v_add_u32 v{VT}, {L_RED}, v{VRA}'); a = VT; base = 0
    else:
        a = VRA; base = slot * RBUF
    for c, acc in enumerate(accs):
        g.A(f'ds_write_b128 v{a}, v[{acc}:{acc+3}] offset:{base + c*RBUF}')

def publish(g, slot, nacc, sbase, local, rr=VRR, fence=True):
    skip = g.lab('pub')
    if nacc == 1: g.A(f's_cmp_ge_u32 s{SW}, 4\ns_cbranch_scc1 {skip}')
    d = VD
    if slot == 'R':
        g.A(f'v_add_u32 v{VT}, {L_RED}, v{rr}'); a = VT; o = 0
    else:
        a = rr; o = slot * RBUF // 256
    for k in range(4):
        g.A(f'ds_read2st64_b32 v[{d+2*k}:{d+2*k+1}], v{a} offset0:{o + 10*k} offset1:{o + 10*k + 5}')
    g.A(f's_waitcnt lgkmcnt(2)\nv_add_f32 v{d}, v{d}, v{d+1}\nv_add_f32 v{d+2}, v{d+2}, v{d+3}')
    g.A(f's_waitcnt lgkmcnt(0)\nv_add_f32 v{d+4}, v{d+4}, v{d+5}\nv_add_f32 v{d+6}, v{d+6}, v{d+7}')
    g.A(f'v_add_f32 v{d}, v{d}, v{d+2}\nv_add_f32 v{d+4}, v{d+4}, v{d+6}\nv_add_f32 v{d}, v{d}, v{d+4}')
    g.A(f'v_and_or_b32 v{d}, v{d}, s{SMASK}, v{VTAG}')
    dual = local and g.cfg.get('local', 1)
    g.A(f'buffer_store_dword v{d}, v{VPUB}, s[{S_WS}:{S_WS+3}], s{sbase} offen{"" if dual else " sc1"}')
    g.A(f'{skip}:')
    if fence or dual: g.A('s_barrier')
    if dual:
        skip2 = g.lab('pb2')
        if nacc == 1: g.A(f's_cmp_ge_u32 s{SW}, 4\ns_cbranch_scc1 {skip2}')
        g.A(f's_add_u32 s{sbase}, s{sbase}, {YOFF:#x}\nbuffer_store_dword v{d}, v{VPUB}, s[{S_WS}:{S_WS+3}], s{sbase} offen sc1')
        g.A(f'{skip2}:')

def store1(g, d, va, sbase, local):
    if local and g.cfg.get('local', 1):
        g.A(f'buffer_store_dword v{d}, v{va}, s[{S_WS}:{S_WS+3}], s{sbase} offen')
        g.A(f's_add_u32 s{sbase}, s{sbase}, {YOFF:#x}\ns_barrier')
    g.A(f'buffer_store_dword v{d}, v{va}, s[{S_WS}:{S_WS+3}], s{sbase} offen sc1')

def acc_off(g, s, stride):
    g.A(f's_lshr_b32 s{ST0}, s{SW}, 2\ns_mul_i32 s{ST0}, s{ST0}, {stride}\ns_add_u32 s{s}, s{s}, s{ST0}')

def poll(g, loads, local, sleep, mid=None, onfail=None):
    if g.cfg.get('streamonly'):
        if g.cfg.get('streamonly') == 1: g.A('s_waitcnt vmcnt(0)'); g.vm = []
        return
    top = g.lab('poll'); done = g.lab('ok')
    masked = (local is not True) and g.cfg.get('masked', 1)
    g.A(f's_mov_b32 s{SCNT}, 0')
    offs = []
    if local:
        for l in loads:
            if l[3] not in offs: offs.append(l[3])
        for k, o in enumerate(offs): g.A(f's_add_u32 s{SP0+k}, s{SLOC}, {o + (YOFF if local == "Y" else 0):#x}')
    g.A(f'{top}:')
    for dst, n, va, so, imm in loads:
        sfx = {4: 'x4', 2: 'x2', 1: ''}[n]
        o = f' offset:{imm}' if imm else ''
        sreg = f's{SP0 + offs.index(so)}' if local else (f's{so}' if so is not None else '0')
        dreg = f'v[{dst}:{dst+n-1}]' if n > 1 else f'v{dst}'
        g.A(f'buffer_load_dword{sfx} {dreg}, v{va}, s[{S_WS}:{S_WS+3}], {sreg} offen{o} sc1')
    if masked: g.A('s_mov_b64 exec, -1')
    g.A(f's_add_u32 s{SCNT}, s{SCNT}, 1')
    if local is True and g.cfg.get('local', 1):
        g.A(f's_and_b32 s{ST0}, s{SCNT}, 127\ns_cmp_eq_u32 s{ST0}, 127\ns_cselect_b32 s{ST0}, {YOFF:#x}, 0\ns_add_u32 s{ST0}, s{ST0}, s{SLOC}')
        for k, o in enumerate(offs): g.A(f's_add_u32 s{SP0+k}, s{ST0}, {o:#x}')
    first = True
    for k, (dst, n, va, so, imm) in enumerate(loads):
        g.A(f's_waitcnt vmcnt({len(loads)-1-k})')
        for r in sorted({dst, dst + n - 1}):
            if first: g.A(f'v_xor_b32 v{VT}, v{r}, v{VTAG}'); first = False
            else: g.A(f'v_bitop3_b32 v{VT}, v{VT}, v{r}, v{VTAG} bitop3:0xf6')
        if mid and k in mid: mid[k]()
    g.A(f'v_and_b32 v{VT}, 0xff, v{VT}\nv_cmp_ne_u32 vcc, 0, v{VT}')
    g.A(f's_cbranch_vccz {done}')
    if onfail:
        sk = g.lab('of')
        g.A(f's_cmp_lg_u32 s{SCNT}, 32\ns_cbranch_scc1 {sk}'); onfail(); g.A(f'{sk}:')
    if sleep: g.A(f's_sleep {sleep}')
    if masked:
        g.A('s_lshr_b64 s[80:81], vcc, 4\ns_or_b64 vcc, vcc, s[80:81]\ns_lshr_b64 s[80:81], vcc, 2\ns_or_b64 vcc, vcc, s[80:81]\ns_lshr_b64 s[80:81], vcc, 1\ns_or_b64 vcc, vcc, s[80:81]')
        g.A('s_and_b32 s80, vcc_lo, 0x01010101\ns_and_b32 s81, vcc_hi, 0x01010101\ns_mul_i32 exec_lo, s80, 0xff\ns_mul_i32 exec_hi, s81, 0xff')
    g.A(f's_cmp_lt_u32 s{SCNT}, {SPIN_MAX}\ns_cbranch_scc1 {top}')
    if masked: g.A('s_mov_b64 exec, -1')
    g.A(f'{done}:')
    if g.cfg.get('prof'): g.A(f's_lshl_b32 s{SPOLL}, s{SPOLL}, 4\ns_min_u32 s{SCNT}, s{SCNT}, 15\ns_or_b32 s{SPOLL}, s{SPOLL}, s{SCNT}')
    g.vm = []

def hint_wait(g, typ, nfl, wave, pair=False, sleep=1, delay=0):
    if not g.cfg.get('hints', 1): return
    top = g.lab('hint'); done = g.lab('hok')
    g.A(f's_cmp_lg_u32 s{SW}, {wave}\ns_cbranch_scc1 {done}')
    if pair:
        g.A(f's_lshl_b32 s{SP0}, s{SU}, 7\ns_add_u32 s{SP0}, s{SP0}, s{SLOC}\ns_add_u32 s{SP0}, s{SP0}, {O_PF + typ*2048:#x}')
    else:
        g.A(f's_add_u32 s{SP0}, s{SLOC}, {O_FLG + typ*128:#x}')
    g.A(f's_mov_b32 s{SCNT}, 0\nv_min_u32 v{VFL}, {nfl-1}, v{VL}\nv_lshlrev_b32 v{VFL}, 2, v{VFL}')
    g.A(f'{top}:')
    g.A(f'buffer_load_dword v{VT}, v{VFL}, s[{S_WS}:{S_WS+3}], s{SP0} offen sc1\ns_add_u32 s{SCNT}, s{SCNT}, 1\ns_waitcnt vmcnt(0)')
    seen = g.lab('hseen')
    g.A(f'v_cmp_ne_u32 vcc, v{VT}, v{VEP}\ns_cbranch_vccz {seen}')
    if sleep: g.A(f's_sleep {sleep}')
    g.A(f's_cmp_lt_u32 s{SCNT}, {HINT_MAX}\ns_cbranch_scc1 {top}')
    g.A(f'{seen}:')
    if delay: g.A(f's_cmp_eq_u32 s{SCNT}, 1\ns_cbranch_scc1 {done}\ns_sleep {delay}')
    g.A(f'{done}:')
    g.A('s_barrier')

def spin_flags(g, va, sleep):
    top = g.lab('sp'); done = g.lab('spok')
    g.A(f's_mov_b32 s{SCNT}, 0')
    g.A(f'{top}:')
    g.A(f'buffer_load_dword v{VT}, v{va}, s[{S_WS}:{S_WS+3}], s{SP0} offen sc1\ns_add_u32 s{SCNT}, s{SCNT}, 1\ns_waitcnt vmcnt(0)')
    g.A(f'v_cmp_ne_u32 vcc, v{VT}, v{VEP}\ns_cbranch_vccz {done}')
    if sleep: g.A(f's_sleep {sleep}')
    g.A(f's_cmp_lt_u32 s{SCNT}, {HINT_MAX}\ns_cbranch_scc1 {top}')
    g.A(f'{done}:')

def hint_set(g, typ, wave, pair=False):
    if not g.cfg.get('hints', 1): return
    skip = g.lab('hs')
    g.A(f's_cmp_lg_u32 s{SW}, {wave}\ns_cbranch_scc1 {skip}')
    g.A(f's_lshl_b32 s{ST0}, s{SU}, {7 if pair else 2}\ns_add_u32 s{ST0}, s{ST0}, s{SLOC}\ns_add_u32 s{ST0}, s{ST0}, {(O_PF + typ*2048) if pair else (O_FLG + typ*128):#x}')
    g.A(f's_mov_b64 exec, 1\nbuffer_store_dword v{VEP}, v{VL}, s[{S_WS}:{S_WS+3}], s{ST0} offen\ns_mov_b64 exec, -1')
    g.A(f'{skip}:')

def barrier(g): g.A('s_waitcnt lgkmcnt(0)\ns_barrier')

def silu(g, src, dst=VS):
    t = VD + 8
    g.A(f'v_lshlrev_b32 v{t}, 16, v{src}\nv_mul_f32 v{t+1}, {NLOG2E:#x}, v{t}\nv_exp_f32 v{t+1}, v{t+1}\nv_add_f32 v{t+1}, 1.0, v{t+1}')
    g.A(f'v_rcp_f32 v{t+2}, v{t+1}\nv_mul_f32 v{t+3}, v{t}, v{t+2}')
    xpack(g, dst, t + 3)

def ln_scalars(g, s1, s2, t):
    g.A(f'v_mul_f32 v{s1}, 0x3a800000, v{s1}\nv_mul_f32 v{s2}, 0x3a800000, v{s2}')
    g.A(f'v_fma_f32 v{s2}, -v{s1}, v{s1}, v{s2}\nv_max_f32 v{s2}, 0, v{s2}')
    rb_pair(g, s1, s2, t)
    g.A(f'v_add_f32 v{s2}, 0x3727c5ac, v{s2}')
    rb(g, s2)
    g.A(f'v_sqrt_f32 v{s2}, v{s2}')
    rb(g, s2)

def pair_reduce_s3(g, X, T):
    g.A(f'v_permlane32_swap_b32 v{X}, v{X+1}\nv_add_f32 v{X}, v{X}, v{X+1}\nv_mov_b32 v{T}, v{X}\nv_permlane16_swap_b32 v{X}, v{T}\nv_add_f32 v{X}, v{X}, v{T}')
    g.A(f'v_add_f32_dpp v{X}, v{X}, v{X} row_ror:8 {DPPF}')

def tile_addr(g, va, srow, stride, scol, kf=VKF):
    g.A(f's_mul_i32 s{srow}, s{srow}, {stride}\ns_add_u32 s{srow}, s{srow}, s{scol}')
    g.A(f'v_mul_u32_u24 v{va}, {stride}, v{kf}\nv_lshl_add_u32 v{va}, v{VN}, 4, v{va}\nv_add_u32 v{va}, s{srow}, v{va}')

def p1_addr(g, va, cg_base):
    g.A(f's_and_b32 s{ST2}, s{SU}, 7\ns_lshl_b32 s{ST2}, s{ST2}, 7\ns_lshl_b32 s{ST1}, s{SW}, 4\ns_add_u32 s{ST2}, s{ST2}, s{ST1}')
    g.A(f's_and_b32 s{ST1}, s{SU}, 8\ns_add_u32 s{ST1}, s{ST1}, s{SXC}')
    if cg_base: g.A(f's_add_u32 s{ST1}, s{ST1}, {cg_base}')
    g.A(f's_lshl_b32 s{ST1}, s{ST1}, 8')
    tile_addr(g, va, ST2, 12288, ST1)

def finish(g):
    if g.cfg.get('streamonly'): g.A('s_waitcnt vmcnt(0)'); g.stamp(10)
    if g.cfg.get('prof') and 'diag' not in g.cfg:
        g.A(f's_lshl_b32 s{ST0}, s2, 3\ns_add_u32 s{ST0}, s{ST0}, s{SW}\ns_lshl_b32 s{ST0}, s{ST0}, 6\ns_add_u32 s{ST0}, s{ST0}, {PROF:#x}')
        g.A(f's_getreg_b32 s{ST1}, hwreg(HW_REG_XCC_ID)')
        g.A(f'v_mov_b32 v{VT}, 0\ns_mov_b64 exec, 1')
        for k in range(NST):
            g.A(f'v_mov_b32 v{VD}, s{SST+2*k}\nbuffer_store_dword v{VD}, v{VT}, s[{S_WS}:{S_WS+3}], s{ST0} offen offset:{4*k}')
        g.A(f'v_mov_b32 v{VD}, s{SPOLL}\nbuffer_store_dword v{VD}, v{VT}, s[{S_WS}:{S_WS+3}], s{ST0} offen offset:56')
        g.A(f'v_mov_b32 v{VD}, s{ST1}\nbuffer_store_dword v{VD}, v{VT}, s[{S_WS}:{S_WS+3}], s{ST0} offen offset:60')
    g.A('s_endpgm')

def prologue(g):
    cfg = g.cfg
    if cfg.get('prof'): g.A(f's_memrealtime s[{SST}:{SST+1}]')
    g.A(f's_load_dwordx2 s[{S_WS}:{S_WS+1}], s[0:1], 96\ns_load_dwordx2 s[{S_MOD}:{S_MOD+1}], s[0:1], 72\ns_load_dwordx2 s[{S_CC}:{S_CC+1}], s[0:1], 64\ns_load_dwordx2 s[{S_X}:{S_X+1}], s[0:1], 0')
    g.A('s_cmp_ge_u32 s2, 256\ns_cbranch_scc1 L_exit')
    g.A(f'v_lshrrev_b32 v{VT}, 6, v0\nv_and_b32 v{VL}, 63, v0')
    g.A(f'v_readfirstlane_b32 s{SW}, v{VT}')
    g.A(f'v_lshrrev_b32 v{VKQ}, 4, v{VL}\nv_and_b32 v{VN}, 15, v{VL}')
    g.A(f's_and_b32 s{SXC}, s2, 7\ns_bfe_u32 s{SU}, s2, 0x40003')
    if cfg.get('xrot'):
        g.A(f's_add_u32 s{SXC}, s{SXC}, s{SU}\ns_and_b32 s{SXC}, s{SXC}, 7')

def code_prefetch(g):
    if not g.cfg.get('code_pf', 1): return
    lab = g.lab('pc'); skip = g.lab('npf')
    g.A(f's_cmp_ge_u32 s{SW}, 4\ns_cbranch_scc1 {skip}')
    g.A(f's_getpc_b64 s[{SEX}:{SEX+1}]')
    g.A(f'{lab}:')
    g.A(f'v_min_u32 v{VT}, (L_exit-{lab})/64, v0\nv_lshlrev_b32 v{VT}, 6, v{VT}')
    g.A(f'global_load_dword v250, v{VT}, s[{SEX}:{SEX+1}]')
    g.A(f'{skip}:')

def prewarm(g, first, count, wave=7, fl='sc1'):
    skip = g.lab('pw')
    g.A(f's_cmp_lg_u32 s{SW}, {wave}\ns_cbranch_scc1 {skip}\ns_cmp_ge_u32 s{SU}, {count}\ns_cbranch_scc1 {skip}')
    g.A(f's_lshl_b32 s{ST0}, s{SU}, 13\ns_add_u32 s{ST0}, s{ST0}, s{SLOC}\ns_add_u32 s{ST0}, s{ST0}, {first:#x}\nv_lshlrev_b32 v{VT}, 7, v{VL}\nbuffer_load_dword v251, v{VT}, s[{S_WS}:{S_WS+3}], s{ST0} offen {fl}')
    g.A(f'{skip}:')

def late_consts(g, grp):
    g.A(f's_mov_b32 s{SMASK}, 0xffffff00\ns_mov_b32 s{SHI}, 0xffff0000\ns_mov_b32 s{SPOLL}, 0')
    srdc(g, S_WS, WS_BYTES)
    if grp == 'A': srdc(g, S_WO, 4096 * 1024 * 2); srdc(g, S_W2, 3584 * 1024 * 2)
    else: srdc(g, S_W1, 1024 * 3584 * 2); srdc(g, S_OUT, 4096)
    g.A(f's_mul_i32 s{SLOC}, s{SXC}, {LSTR:#x}\ns_add_u32 s{SLOC}, s{SLOC}, {LOC if g.cfg.get("local", 1) else LOC + YOFF:#x}')

def kf_const(g, dst=VKF, mul=2):
    g.A(f'v_and_b32 v{dst}, 1, v{VKQ}\nv_lshrrev_b32 v{VT}, 1, v{VKQ}\nv_lshl_add_u32 v{dst}, v{dst}, {mul}, v{VT}')

def ve_const(g):
    g.A(f'v_bfe_u32 v{VB}, v{VL}, 2, 1\nv_and_b32 v{VE}, 3, v{VL}\nv_lshl_add_u32 v{VE}, v{VE}, 2, v{VKQ}\nv_lshl_add_u32 v{VE}, v{VB}, 10, v{VE}\nv_lshlrev_b32 v{VE}, 1, v{VE}')

def zero_stamps(g):
    if g.cfg.get('prof'):
        for k in range(1, NST): g.A(f's_mov_b64 s[{SST+2*k}:{SST+1+2*k}], 0')

def lane_consts(g, needq):
    g.A(f'v_and_b32 v{VIDX}, 3, v{VL}\nv_mul_u32_u24 v{VIDX}, 0x5555, v{VIDX}')
    for r in range(8): g.A(f'v_mov_b32 v{VF[0]+r}, 0')
    g.A(f'v_lshrrev_b32 v{VG16}, 3, v{VL}\nv_lshlrev_b32 v{VG16}, 10, v{VG16}\nv_and_b32 v{VT}, 7, v{VL}\nv_lshl_add_u32 v{VG16}, v{VT}, 4, v{VG16}')
    g.A(f's_lshl_b32 s{ST0}, s{SW}, 7\nv_add_u32 v{VG16}, s{ST0}, v{VG16}')
    g.A(f's_mul_i32 s{ST0}, s{SW}, {RSTR}\nv_mul_u32_u24 v{VRA}, 288, v{VKQ}\nv_lshl_add_u32 v{VRA}, v{VN}, 4, v{VRA}\nv_add_u32 v{VRA}, s{ST0}, v{VRA}')
    g.A(f's_and_b32 s{ST0}, s{SW}, 3\ns_lshl_b32 s{ST0}, s{ST0}, 6\nv_add_u32 v{VD}, s{ST0}, v{VL}\nv_lshlrev_b32 v{VPUB}, 2, v{VD}')
    g.A(f's_lshr_b32 s{ST0}, s{SW}, 2\ns_mul_i32 s{ST0}, s{ST0}, {RBUF}\nv_and_b32 v{VD+1}, 3, v{VD}\nv_lshl_add_u32 v{VD+1}, v{VD+1}, 2, s{ST0}')
    g.A(f'v_bfe_u32 v{VD+2}, v{VD}, 2, 1\nv_bfe_u32 v{VD+3}, v{VD}, 4, 1\nv_lshl_add_u32 v{VD+3}, v{VD+2}, 1, v{VD+3}\nv_mul_u32_u24 v{VRR}, 288, v{VD+3}')
    g.A(f'v_lshrrev_b32 v{VD+3}, 5, v{VD}\nv_bfe_u32 v{VD+4}, v{VD}, 3, 1\nv_lshl_add_u32 v{VD+3}, v{VD+3}, 1, v{VD+4}\nv_lshl_add_u32 v{VRR}, v{VD+3}, 4, v{VRR}\nv_add_u32 v{VRR}, v{VRR}, v{VD+1}')
    if needq:
        g.A(f'v_lshrrev_b32 v{VD+3}, 7, v{VD}\nv_lshl_add_u32 v{VD+3}, v{VD+2}, 1, v{VD+3}\nv_mul_u32_u24 v{VRRQ}, 288, v{VD+3}')
        g.A(f'v_bfe_u32 v{VD+3}, v{VD}, 3, 4\nv_lshl_add_u32 v{VRRQ}, v{VD+3}, 4, v{VRRQ}\nv_add_u32 v{VRRQ}, v{VRRQ}, v{VD+1}')
    g.A('s_waitcnt lgkmcnt(0)')
    g.A(f's_add_u32 s{STAG}, s{STAG}, 1\ns_and_b32 s{ST0}, s{STAG}, 0xff\nv_mov_b32 v{VTAG}, s{ST0}\nv_mov_b32 v{VEP}, s{STAG}')

def load_c(g, vc):
    g.A(f's_lshl_b32 s{ST1}, s{SW}, 5\ns_and_b32 s{ST0}, s{SU}, 7\ns_lshl_b32 s{ST0}, s{ST0}, 8\ns_add_u32 s{ST0}, s{ST0}, s{ST1}')
    g.A(f'buffer_load_ushort v{vc}, v{VE}, s[{S_CC}:{S_CC+3}], s{ST0} offen'); g.issued('c')
def load_xr(g, vxr):
    g.A(f's_lshl_b32 s{ST1}, s{SW}, 5\ns_lshl_b32 s{ST0}, s{SXC}, 8\ns_add_u32 s{ST0}, s{ST0}, s{ST1}')
    g.A(f'buffer_load_ushort v{vxr}, v{VE}, s[{S_X}:{S_X+3}], s{ST0} offen{" nt" if g.cfg.get("smallnt") else ""}'); g.issued('xr')

def prog_A(g, head):
    cfg = g.cfg
    W1B, WQ, WO, W2 = 80, 96, 128, 160
    VA1, VAQ, VAO, VA2 = 210, 211, 212, 214
    VC, VXR, VXF, VLN = 216, 217, 218, 220
    VGO, VGH, VGQ, VQS = 222, 224, 226, 227
    ACC2 = 72
    wq_l = [lambda win, t=t, h=h, c=c: wload(g, 'wq', WQ + 16 * t + 8 * c + 4 * h, VAQ, S_WQ, (8 * t + 2 * h) * 8192, c * 256, win) for t in range(2) for h in range(2) for c in range(2)]
    p1_l = [lambda win, t=t, h=h: wload(g, 'p1b', W1B + 8 * t + 4 * h, VA1, S_MOD, (8 * t + 2 * h) * 12288, 0, win) for t in range(2) for h in range(2)]
    wo_l = [lambda win, i=i, h=h: wload(g, 'wo', WO + 8 * i + 4 * h, VAO, S_WO, (8 * i + 2 * h) * 2048, 0, win) for i in range(4) for h in range(2)]
    w2_l = [lambda win, i=i, h=h: wload(g, 'w2', W2 + 8 * i + 4 * h, VA2, S_W2, (8 * i + 2 * h) * 2048, 0, win) for i in range(4) for h in range(2)]
    seq = wq_l + p1_l + wo_l + w2_l
    pos = [0]
    def emit(upto, win):
        while pos[0] < min(upto, len(seq)): seq[pos[0]](win); pos[0] += 1
    if head:
        g.A(f's_load_dwordx2 s[{S_WQ}:{S_WQ+1}], s[0:1], 24\ns_load_dwordx2 s[{S_WO}:{S_WO+1}], s[0:1], 32\ns_load_dwordx2 s[{S_W2}:{S_W2+1}], s[0:1], 56')
        code_prefetch(g)
        kf_const(g)
        srdc(g, S_X, 4096); srdc(g, S_WQ, 1024 * 4096 * 2); srdc(g, S_WS, WS_BYTES)
        g.A(f's_lshl_b32 s{ST2}, s{SXC}, 7\ns_lshl_b32 s{ST1}, s{SW}, 4\ns_add_u32 s{ST2}, s{ST2}, s{ST1}\ns_lshl_b32 s{ST1}, s{SU}, 9')
        tile_addr(g, VAQ, ST2, 8192, ST1)
        ve_const(g)
        g.A(f'v_lshrrev_b32 v{VD+1}, 5, v{VL}\nv_lshlrev_b32 v{VD+1}, 11, v{VD+1}\nv_and_b32 v{VD}, 31, v{VL}\nv_lshl_add_u32 v{VD+1}, v{VD}, 3, v{VD+1}\ns_lshl_b32 s{ST2}, s{SW}, 8')
        g.A(f's_mul_i32 s{SLOC}, s{SXC}, {LSTR:#x}\ns_add_u32 s{SLOC}, s{SLOC}, {LOC:#x}')
        g.A('s_waitcnt lgkmcnt(0)')
        g.A(f's_load_dword s{STAG}, s[{S_WS}:{S_WS+1}], 0')
        if cfg.get('pw0', 1): prewarm(g, 0, 2, 7, 'nt')
        g.A(f'buffer_load_dwordx2 v[{VXF}:{VXF+1}], v{VD+1}, s[{S_X}:{S_X+3}], s{ST2} offen'); g.issued('xf')
        load_xr(g, VXR)
        emit(cfg.get('A_e0', 4), 0)
        g.A('s_branch L_progA')
        return
    pos[0] = cfg.get('A_e0', 4)
    zero_stamps(g); g.stamp(12)
    late_consts(g, 'A')
    srdc(g, S_MOD, 1024 * 6144 * 2); srdc(g, S_CC, 4096)
    lane_consts(g, True)
    p1_addr(g, VA1, 16)
    g.A(f's_lshl_b32 s{ST2}, s{SU}, 8\ns_lshl_b32 s{ST1}, s{SW}, 5\ns_add_u32 s{ST2}, s{ST2}, s{ST1}\ns_lshl_b32 s{ST1}, s{SXC}, 8')
    tile_addr(g, VAO, ST2, 2048, ST1)
    g.wait('xr')
    s1, s2 = VD, VD + 1
    g.A(f's_mov_b32 s{ST0}, 0x3f803f80\nv_dot2_f32_bf16 v{s1}, v{VXF}, s{ST0}, 0\nv_dot2_f32_bf16 v{s2}, v{VXF}, v{VXF}, 0')
    g.A(f'v_dot2_f32_bf16 v{s1}, v{VXF+1}, s{ST0}, v{s1}\nv_dot2_f32_bf16 v{s2}, v{VXF+1}, v{VXF+1}, v{s2}')
    for mode in ['quad_perm:[1,0,3,2]', 'quad_perm:[2,3,0,1]', 'row_half_mirror', 'row_mirror']:
        for r in (s1, s2): g.A(f'v_add_f32_dpp v{r}, v{r}, v{r} {mode} {DPPF}')
    g.A(f's_lshl_b32 s{ST0}, s{SW}, 5\ns_add_u32 s{ST0}, s{ST0}, {L_Q}\nv_lshl_add_u32 v{VT}, v{VKQ}, 3, s{ST0}\nds_write_b64 v{VT}, v[{s1}:{s2}]')
    emit(8, cfg.get('A_w1', 4)); g.stamp(1)
    load_c(g, VC)
    barrier(g)
    g.A(f'v_lshrrev_b32 v{VT}, 3, v{VL}\nv_lshlrev_b32 v{VT}, 5, v{VT}\nv_lshl_add_u32 v{VT}, v{VB}, 4, v{VT}\nv_add_u32 v{VT}, {L_Q}, v{VT}\nds_read_b128 v[{VD}:{VD+3}], v{VT}')
    g.A(f's_waitcnt lgkmcnt(0)\nv_add_f32 v{VD}, v{VD}, v{VD+2}\nv_add_f32 v{VD+1}, v{VD+1}, v{VD+3}')
    pair_reduce_s3(g, VD, VD + 2)
    g.A(f'v_mov_b32 v{VD+1}, v{VD}\nv_permlane32_swap_b32 v{VD}, v{VD+1}')
    ln_scalars(g, s1, s2, VD + 2)
    g.A(f'v_lshlrev_b32 v{VLN}, 16, v{VXR}\nv_sub_f32 v{VLN}, v{VLN}, v{s1}')
    rb(g, VLN)
    g.A(f'v_rcp_f32 v{VD+4}, v{s2}\nv_mul_f32 v{VD+5}, v{VLN}, v{VD+4}\nv_fma_f32 v{VD+6}, -v{VD+5}, v{s2}, v{VLN}\nv_fma_f32 v{VLN}, v{VD+6}, v{VD+4}, v{VD+5}')
    rb(g, VLN)
    g.A(f's_lshl_b32 s{ST2}, s{SU}, 4\ns_add_u32 s{ST2}, s{ST2}, s{SXC}\ns_lshl_b32 s{ST2}, s{ST2}, 10\ns_add_u32 s{ST2}, s{ST2}, {QP:#x}')
    acc_off(g, ST2, 8192)
    zero_acc(g, VACC + [ACC2])
    sa, ca = VD, VD + 4
    poll(g, [(sa, 4, VG16, O_MOD, 0), (ca, 4, VG16, O_MOD + 0x2000, 0)], True, 1); g.stamp(3)
    rscatter(g, [sa, ca])
    rb_pair(g, sa, ca, VD + 1)
    g.A(f'v_add_f32 v{ca}, 1.0, v{ca}'); rb(g, ca)
    g.A(f'v_mul_f32 v{ca}, v{ca}, v{VLN}'); rb(g, ca)
    g.A(f'v_add_f32 v{ca}, v{ca}, v{sa}'); xpack(g, VX, ca)
    gemv(g, [VX], [[WQ + 16 * t, WQ + 16 * t + 8] for t in range(2)], VACC)
    red_write(g, VACC, 1)
    barrier(g)
    publish(g, 1, 2, ST2, False, VRRQ); g.stamp(4)
    g.A(f's_cmp_lt_u32 s{SU}, 14\ns_cbranch_scc1 L_A_norelay')
    g.A(f's_and_b32 s{ST2}, s{SU}, 1\ns_lshl_b32 s{ST2}, s{ST2}, 3\ns_add_u32 s{ST2}, s{ST2}, s{SW}')
    g.A(f's_and_b32 s{ST0}, s{SXC}, 3\ns_lshl_b32 s{ST0}, s{ST0}, 3\ns_lshr_b32 s{ST1}, s{ST2}, 1\ns_add_u32 s{ST0}, s{ST0}, s{ST1}\ns_lshl_b32 s{ST0}, s{ST0}, 13')
    g.A(f's_lshr_b32 s{ST1}, s{SXC}, 2\ns_lshl_b32 s{ST1}, s{ST1}, 9\ns_add_u32 s{ST0}, s{ST0}, s{ST1}\ns_and_b32 s{ST1}, s{ST2}, 1\ns_lshl_b32 s{ST1}, s{ST1}, 8\ns_add_u32 s{ST0}, s{ST0}, s{ST1}\ns_add_u32 s{ST0}, s{ST0}, {QP:#x}')
    g.A(f'v_lshlrev_b32 v{VGQ}, 10, v{VKQ}\nv_lshl_add_u32 v{VGQ}, v{VN}, 4, v{VGQ}\nv_add_u32 v{VGQ}, s{ST0}, v{VGQ}')
    g.A(f'v_lshlrev_b32 v{VQS}, 4, v{VN}\nv_lshl_add_u32 v{VQS}, v{VKQ}, 2, v{VQS}')
    g.A(f's_lshl_b32 s{ST2}, s{ST2}, 8\ns_add_u32 s{ST2}, s{ST2}, s{SLOC}\ns_add_u32 s{ST2}, s{ST2}, {O_QL:#x}\ns_mov_b32 s{ST3}, 0x1000')
    g.A(f'buffer_load_dword v251, v{VQS}, s[{S_WS}:{S_WS+3}], s{ST2} offen sc1')
    g.sleep('d2', 8)
    poll(g, [(VD, 4, VGQ, None, 0), (VD + 4, 4, VGQ, ST3, 0)], False, cfg.get('r2', 4))
    for i in range(4): g.A(f'v_add_f32 v{VD+i}, v{VD+i}, v{VD+4+i}')
    rscatter(g, [VD], ror=False)
    g.A(f'v_and_or_b32 v{VD}, v{VD}, s{SMASK}, v{VTAG}')
    store1(g, VD, VQS, ST2, True); g.stamp(5)
    for f in p1_l: f(0)
    g.A('s_branch L_A_p1issued')
    g.A('L_A_norelay:')
    g.vm = []
    def swarm(first, n):
        g.A(f's_lshl_b32 s{ST1}, s{SU}, 3\ns_add_u32 s{ST1}, s{ST1}, s{SW}\ns_mul_i32 s{ST1}, s{ST1}, {64*n}\ns_add_u32 s{ST1}, s{ST1}, s{SLOC}\ns_add_u32 s{ST1}, s{ST1}, {first:#x}')
        g.A(f's_add_u32 s80, s{S_WS}, s{ST1}\ns_addc_u32 s81, s{S_WS+1}, 0')
        for k in range(n): g.A(f's_load_dword s{SH}, s[80:81], {k*64}')
    g.sleep('d_p1', 0)
    emit(9, 0)
    swarm(O_FLG, 10)
    emit(10, cfg.get('A_w1b', 1))
    swarm(0x4000, 7)
    emit(8 + cfg.get('A_n1', 4), cfg.get('A_w1b', 1))
    g.sleep('d_wo', 0)
    emit(12, 0)
    g.A('L_A_p1issued:')
    silu(g, VC)
    g.A(f's_mul_i32 s{ST2}, s{SU}, 224\ns_min_u32 s{ST1}, s{SW}, 6\ns_lshl_b32 s{ST1}, s{ST1}, 5\ns_add_u32 s{ST2}, s{ST2}, s{ST1}\ns_lshl_b32 s{ST1}, s{SXC}, 8')
    tile_addr(g, VA2, ST2, 2048, ST1)
    g.A(f's_lshl_b32 s{ST2}, s{SU}, 3\ns_add_u32 s{ST2}, s{ST2}, s{SW}\ns_lshl_b32 s{ST2}, s{ST2}, 7\ns_add_u32 s{ST2}, s{ST2}, {OC:#x}')
    g.A(f'v_and_b32 v{VGO}, 3, v{VL}\nv_lshl_add_u32 v{VGO}, v{VKQ}, 2, v{VGO}\nv_lshlrev_b32 v{VGO}, 3, v{VGO}\nv_lshl_add_u32 v{VGO}, v{VB}, 14, v{VGO}\nv_add_u32 v{VGO}, s{ST2}, v{VGO}')
    g.A(f'v_lshrrev_b32 v{VD}, 3, v{VL}\nv_and_b32 v{VD+1}, 7, v{VL}')
    g.A(f's_mul_i32 s{ST0}, s{SU}, 224\ns_min_u32 s{ST1}, s{SW}, 6\ns_lshl_b32 s{ST1}, s{ST1}, 5\ns_add_u32 s{ST0}, s{ST0}, s{ST1}\ns_lshr_b32 s{ST1}, s{ST0}, 7\ns_and_b32 s{ST0}, s{ST0}, 127')
    g.A(f's_lshl_b32 s{ST2}, s{ST1}, 13\ns_lshl_b32 s{ST0}, s{ST0}, 3\ns_add_u32 s{ST2}, s{ST2}, s{ST0}\ns_add_u32 s{ST2}, s{ST2}, {HIDP:#x}')
    g.A(f'v_lshlrev_b32 v{VGH}, 10, v{VD}\nv_lshl_add_u32 v{VGH}, v{VD+1}, 4, v{VGH}\nv_add_u32 v{VGH}, s{ST2}, v{VGH}')
    zero_acc(g, VACC)
    emit(cfg.get('A_e2', 16), cfg.get('A_w2', 4))
    g.wait('p1b')
    gemv(g, [VS], [[W1B], [W1B + 8]], [ACC2])
    g.A(f's_lshl_b32 s{ST2}, s{SU}, 10\ns_add_u32 s{ST2}, s{ST2}, s{SLOC}\ns_add_u32 s{ST2}, s{ST2}, {O_MOD + 0x4000:#x}')
    red_write(g, [ACC2], 5)
    emit(cfg.get('A_e2b', 20), cfg.get('A_w2', 4))
    barrier(g)
    publish(g, 5, 1, ST2, True, fence=False); g.stamp(2)
    emit(20, cfg.get('A_w2', 4))
    emit(cfg.get('A_e3', 20), cfg.get('A_w2b', 2))
    if cfg.get('prof'): g.wait('wo'); g.stamp(13)
    g.A(f's_lshl_b32 s{ST2}, s{SU}, 10\ns_add_u32 s{ST2}, s{ST2}, s{SLOC}\ns_add_u32 s{ST2}, s{ST2}, {O_AT:#x}')
    hint_wait(g, 0, 16, 7, delay=cfg.get('d3', 12)); g.stamp(11)
    poll(g, [(VX, 2, VGO, None, 0)], False, cfg.get('r3', 4)); g.stamp(6)
    g.A(f'v_lshrrev_b32 v{VX}, 16, v{VX}\nv_lshrrev_b32 v{VX+1}, 16, v{VX+1}')
    gemv(g, [VX, VX + 1], [[WO + 8 * i] for i in range(4)], [VACC[0]])
    red_write(g, [VACC[0]], 3)
    barrier(g)
    publish(g, 3, 1, ST2, True); g.stamp(7)
    g.A(f's_lshl_b32 s{ST2}, s{SU}, 10\ns_add_u32 s{ST2}, s{ST2}, s{SLOC}\ns_add_u32 s{ST2}, s{ST2}, {O_OUT:#x}')
    g.A(f's_cmp_eq_u32 s{SW}, 7\ns_cbranch_scc1 L_A_w2skip')
    g.sleep('d_w2', 0)
    emit(28, cfg.get('A_w3', 3))
    g.A('L_A_w2skip:')
    AV = VD
    hint_wait(g, 1, 14, 7, delay=cfg.get('d5', 10)); g.stamp(8)
    g.A(f's_cmp_eq_u32 s{SW}, 7\ns_cbranch_scc1 L_A_p6skip')
    poll(g, [(AV, 4, VGH, None, 0), (AV + 4, 4, VGH, None, 128)], False, cfg.get('r5', 4)); g.stamp(9)
    rscatter(g, [AV, AV + 4])
    g.A(f'v_max_f32 v{AV}, 0, v{AV}\nv_max_f32 v{AV+4}, 0, v{AV+4}')
    xpack(g, VX, AV); xpack(g, VX + 1, AV + 4)
    gemv(g, [VX, VX + 1], [[W2 + 8 * i] for i in range(4)], [VACC[1]])
    g.A('L_A_p6skip:')
    red_write(g, [VACC[1]], 4)
    barrier(g)
    publish(g, 4, 1, ST2, True, fence=False); g.stamp(10)
    finish(g)

def prog_B(g):
    cfg = g.cfg
    KF, VFR, PF, W1B, W1 = 80, 112, 144, 160, 192
    W1A = 144; ONES = 176; VPI = 184; LACC = 188
    VAK = [224, 225, 226, 227]; VAV = [228, 229]
    VA1B, VA5 = 230, 231
    VC, VXR, VC2 = 232, 233, 234
    VQG, VQW, VQR, VVR, VMX, VMW, VPW, VPR, VOS, VH2 = 240, 241, 242, 243, 244, 245, 246, 247, 248, 249
    VGO, VGM, VCS = 252, 253, 254
    ACC2 = [72, 76]
    def dma(name, i, srdn, lbase, va, win):
        g.A(f's_add_u32 s{SK1}, s{SK0}, {(i * 8192 - (i % 4) * 1024) if cfg.get("kvm", 1) else (i // 4) * 4096}')
        g.window(win)
        if i % 4 == 0:
            g.A(f's_lshl_b32 s{ST0}, s{SW}, 13\ns_add_u32 m0, s{ST0}, {lbase + (i//4)*4096}')
        o = f' offset:{(i%4)*1024}' if i % 4 else ''
        g.A(f'buffer_load_dwordx4 v{va}, s[{srdn}:{srdn+3}], s{SK1} offen{o} nt lds'); g.issued(name)
    k_l = [lambda win, i=i: dma('k', i, S_K, L_K, VAK[i % 4], win) for i in range(8)]
    v_l = [lambda win, i=i: dma('v%d' % (i // 4), i, S_V, L_V, VAV[i % 2], win) for i in range(8)]
    p1b_l = [lambda win, t=t, h=h: wload(g, 'p1b', W1B + 8 * t + 4 * h, VA1B, S_MOD, (8 * t + 2 * h) * 12288 + 8192, 0, win) for t in range(2) for h in range(2)]
    w1_l = [lambda win, t=t, h=h, c=c: wload(g, 'w1', W1 + 16 * t + 8 * c + 4 * h, VA5, S_W1, (8 * t + 2 * h) * 7168, c * 256, win) for t in range(2) for h in range(2) for c in range(2)]
    seq = k_l + v_l + p1b_l + w1_l
    pos = [0]
    def emit(upto, win):
        while pos[0] < min(upto, len(seq)): seq[pos[0]](win); pos[0] += 1
    g.A(f's_load_dwordx2 s[{S_K}:{S_K+1}], s[0:1], 8\ns_load_dwordx2 s[{S_V}:{S_V+1}], s[0:1], 16\ns_load_dwordx2 s[{S_W1}:{S_W1+1}], s[0:1], 48')
    kf_const(g)
    p1_addr(g, VA1B, 0)
    srdc(g, S_MOD, 1024 * 6144 * 2); srdc(g, S_CC, 4096)
    ve_const(g)
    g.A(f's_lshl_b32 s{ST1}, s{SW}, 5\ns_and_b32 s{ST2}, s{SU}, 7\ns_lshl_b32 s{ST2}, s{ST2}, 8\ns_add_u32 s{ST2}, s{ST2}, s{ST1}')
    g.A('s_waitcnt lgkmcnt(0)')
    g.A(f's_load_dword s{STAG}, s[{S_WS}:{S_WS+1}], 0\ns_load_dwordx2 s[{S_OUT}:{S_OUT+1}], s[0:1], 80')
    g.A(f'buffer_load_ushort v{VC}, v{VE}, s[{S_CC}:{S_CC+3}], s{ST2} offen'); g.issued('c')
    for t in range(2):
        for h in range(2): wload(g, 'p1a', W1A + 8 * t + 4 * h, VA1B, S_MOD, (8 * t + 2 * h) * 12288)
    zero_stamps(g); g.stamp(12)
    g.A(f's_lshl_b32 s{SK0}, s{SXC}, 23\ns_lshl_b32 s{ST1}, s{SU}, 16\ns_add_u32 s{SK0}, s{SK0}, s{ST1}\ns_lshl_b32 s{ST1}, s{SW}, {10 if cfg.get("kvm", 1) else 13}\ns_add_u32 s{SK0}, s{SK0}, s{ST1}\ns_add_u32 s{SK0}, s{SK0}, {28672*256:#x}')
    g.A(f'v_xor_b32 v{VT}, v{VN}, v{VKQ}\nv_lshlrev_b32 v{VT}, 4, v{VT}\nv_lshl_add_u32 v{VAK[0]}, v{VKQ}, 8, v{VT}')
    for i in range(1, 4): g.A(f'v_xor_b32 v{VAK[i]}, {64*i}, v{VAK[0]}')
    g.A(f'v_lshlrev_b32 v{VT}, 1, v{VKQ}\nv_xor_b32 v{VT}, v{VN}, v{VT}\nv_lshlrev_b32 v{VT}, 4, v{VT}\nv_lshl_add_u32 v{VAV[0]}, v{VKQ}, 8, v{VT}\nv_xor_b32 v{VAV[1]}, 128, v{VAV[0]}')
    srdc(g, S_K, 0x4000000); srdc(g, S_V, 0x4000000); srdc(g, S_X, 4096)
    late_consts(g, 'B')
    lane_consts(g, False)
    g.A(f's_lshl_b32 s{ST2}, s{SXC}, 7\ns_lshl_b32 s{ST1}, s{SW}, 4\ns_add_u32 s{ST2}, s{ST2}, s{ST1}\ns_min_u32 s{ST1}, s{SU}, 13\ns_lshl_b32 s{ST1}, s{ST1}, 9')
    tile_addr(g, VA5, ST2, 7168, ST1)
    g.A(f's_lshl_b32 s{ST0}, s{SW}, 9\nv_lshl_add_u32 v{VQG}, v{VL}, 3, s{ST0}\nv_lshlrev_b32 v{VH2}, 2, v0')
    g.A(f's_mul_i32 s{ST0}, s{SW}, 272\ns_add_u32 s{ST0}, s{ST0}, {L_Q}\nv_lshl_add_u32 v{VQW}, v{VL}, 2, s{ST0}')
    g.A(f'v_and_b32 v{VD}, 7, v{VL}\nv_mul_u32_u24 v{VQR}, 272, v{VD}\nv_lshl_add_u32 v{VQR}, v{VKQ}, 4, v{VQR}\nv_add_u32 v{VQR}, {L_Q}, v{VQR}')
    g.A(f'v_lshlrev_b32 v{VMX}, 5, v{VD}\nv_add_u32 v{VMX}, {L_MAX}, v{VMX}\ns_lshl_b32 s{ST0}, s{SW}, 2\nv_add_u32 v{VMW}, s{ST0}, v{VMX}')
    g.A(f'v_bfe_u32 v{VD+2}, v{VL}, 3, 2\nv_lshlrev_b32 v{VD+2}, 2, v{VD+2}\nv_lshl_add_u32 v{VD+2}, v{VD}, 4, v{VD+2}\nv_lshrrev_b32 v{VD+1}, 5, v{VL}\nv_lshl_add_u32 v{VD+2}, v{VD+1}, 8, v{VD+2}')
    g.A(f's_lshl_b32 s{ST0}, s{SW}, 9\ns_add_u32 s{ST0}, s{ST0}, {L_PX}\nv_add_u32 v{VPW}, s{ST0}, v{VD+2}\nv_lshlrev_b32 v{VPR}, 4, v{VL}\nv_add_u32 v{VPR}, {L_PX}, v{VPR}')
    g.A(f'v_bfe_u32 v{VPI}, v{VL}, 3, 1\nv_mul_u32_u24 v{VPI}, 0xaaaa, v{VPI}\nv_add_u32 v{VPI}, 0x4444, v{VPI}')
    for r in range(4): g.A(f'v_mov_b32 v{ONES+r}, 0x3f803f80')
    g.A(f'v_lshrrev_b32 v{VT}, 2, v{VL}')
    g.A(f'v_and_b32 v{VD+4}, 7, v{VT}\nv_lshlrev_b32 v{VD+4}, 1, v{VD+4}\nv_bfe_u32 v{VD+5}, v{VL}, 1, 1\ns_lshl_b32 s{ST0}, s{SW}, 1\nv_add_u32 v{VD+5}, s{ST0}, v{VD+5}\nv_xor_b32 v{VD+4}, v{VD+4}, v{VD+5}')
    g.A(f'v_lshlrev_b32 v{VVR}, 8, v{VT}\nv_lshl_add_u32 v{VVR}, v{VD+4}, 4, v{VVR}\nv_and_b32 v{VD+5}, 1, v{VL}\nv_lshl_add_u32 v{VVR}, v{VD+5}, 3, v{VVR}\nv_add_u32 v{VVR}, {L_V}, v{VVR}')
    g.A(f'v_and_b32 v{VOS}, 1, v{VKQ}\nv_lshlrev_b32 v{VOS}, 11, v{VOS}\nv_lshl_add_u32 v{VOS}, v{VD+1}, 10, v{VOS}\nv_lshl_add_u32 v{VOS}, v{VN}, 2, v{VOS}')
    g.A(f'v_lshrrev_b32 v{VT}, 3, v{VL}\ns_lshl_b32 s{ST0}, s{SU}, 8\ns_lshl_b32 s{ST1}, s{SW}, 7\ns_add_u32 s{ST0}, s{ST0}, s{ST1}\nv_lshl_add_u32 v{VGO}, v{VD}, 4, s{ST0}\nv_lshl_add_u32 v{VGO}, v{VT}, 12, v{VGO}')
    g.A(f's_lshr_b32 s{ST0}, s{SU}, 1\ns_lshl_b32 s{ST0}, s{ST0}, 4\nv_lshl_add_u32 v{VGM}, v{VT}, 7, s{ST0}')
    g.A(f'v_and_b32 v{VCS}, 3, v{VL}\nv_lshl_add_u32 v{VCS}, v{VKQ}, 2, v{VCS}\nv_lshlrev_b32 v{VCS}, 3, v{VCS}\nv_lshl_add_u32 v{VCS}, v{VB}, 2, v{VCS}')
    a0 = 236
    g.A(f'v_xor_b32 v{VT}, v{VN}, v{VKQ}\nv_lshlrev_b32 v{VT}, 4, v{VT}\nv_lshl_add_u32 v{a0}, v{VN}, 8, v{VT}\ns_lshl_b32 s{ST0}, s{SW}, 13\nv_add_u32 v{a0}, s{ST0}, v{a0}')
    for i in range(1, 4): g.A(f'v_xor_b32 v{a0+i}, {64*i}, v{a0}')
    zero_acc(g, ACC2 + VACC)
    g.A(f's_lshl_b32 s{ST0}, s{SU}, 12\ns_lshl_b32 s{ST1}, s{SW}, 6\ns_add_u32 s{ST0}, s{ST0}, s{ST1}\ns_add_u32 s{ST0}, s{ST0}, s{SLOC}\ns_add_u32 s{SOB}, s{ST0}, {O_OL:#x}')
    g.A(f's_lshl_b32 s{ST0}, s{SU}, 7\ns_add_u32 s{ST0}, s{ST0}, s{SLOC}\ns_add_u32 s{SMB}, s{ST0}, {O_ML:#x}')
    g.A(f's_lshl_b32 s{ST0}, s{SU}, 1\ns_add_u32 s{ST0}, s{ST0}, s{SW}\ns_lshl_b32 s{ST0}, s{ST0}, 7\ns_lshl_b32 s{ST1}, s{SXC}, 12\ns_add_u32 s{ST0}, s{ST0}, s{ST1}\ns_add_u32 s{SH}, s{ST0}, {OC:#x}')
    g.A(f's_mov_b32 s{SLG}, {LOG2E:#x}')
    g.stamp(13)
    g.wait('c')
    silu(g, VC)
    g.wait('p1a'); g.stamp(6)
    gemv(g, [VS], [[W1A], [W1A + 8]], [VACC[0]])
    g.A(f's_lshl_b32 s{ST2}, s{SU}, 10\ns_add_u32 s{ST2}, s{ST2}, s{SLOC}')
    red_write(g, [VACC[0]], 'R')
    barrier(g)
    publish(g, 'R', 1, ST2, True); g.stamp(9)
    W = cfg.get('B_w1', 4)
    emit(12, W)
    g.wait('k'); g.stamp(1)
    for t in range(2):
        for i in range(4):
            r = KF + 16 * t + 4 * i
            g.A(f'ds_read_b128 v[{r}:{r+3}], v{a0+i} offset:{L_K + t*4096}')
    trs = [(s, t) for t in range(2) for s in range(8)]
    def tr_reads(lst):
        for s, t in lst:
            r = VFR + 4 * s + 2 * t
            g.A(f'ds_read_b64_tr_b16 v[{r}:{r+1}], v{VVR} offset:{s*8192 + t*4096}')
    qpos = cfg.get('B_qpos', 13); qpos2 = cfg.get('B_qpos2', 15)
    emit(qpos, W)
    g.A(f's_add_u32 s{SP0}, s{SLOC}, {O_QL:#x}\nbuffer_load_dwordx2 v[{VD}:{VD+1}], v{VQG}, s[{S_WS}:{S_WS+3}], s{SP0} offen sc1'); g.issued('qg')
    if qpos2 > qpos:
        emit(qpos2, W + 1)
        g.A(f'buffer_load_dwordx2 v[186:187], v{VQG}, s[{S_WS}:{S_WS+3}], s{SP0} offen sc1'); g.issued('qg2')
    emit(16, W + 2)
    g.wait('qg')
    vm_fast = list(g.vm)
    chk = lambda: g.A(f'v_xor_b32 v{VT}, v{VD}, v{VTAG}\nv_bitop3_b32 v{VT}, v{VT}, v{VD+1}, v{VTAG} bitop3:0xf6\nv_and_b32 v{VT}, 0xff, v{VT}\nv_cmp_ne_u32 vcc, 0, v{VT}\ns_cbranch_vccz L_B_qok')
    chk()
    if qpos2 > qpos:
        g.wait('qg2')
        g.A(f'v_mov_b32 v{VD}, v186\nv_mov_b32 v{VD+1}, v187')
        chk()
    poll(g, [(VD, 2, VQG, O_QL, 0)], True, 1)
    g.A('L_B_qok:')
    g.vm = vm_fast
    g.stamp(2)
    g.A(f'v_cvt_pk_bf16_f32 v{VD}, v{VD}, v{VD+1}\nds_write_b32 v{VQW}, v{VD}')
    barrier(g)
    QF = VD
    for i in range(4): g.A(f'ds_read_b128 v[{QF+4*i}:{QF+4*i+3}], v{VQR} offset:{64*i}')
    emit(pos[0] + cfg.get('B_n3a', 2), 0)
    S = VD + 16
    for i in range(4):
        g.A(f's_waitcnt lgkmcnt({3 - i})')
        for t in range(2):
            acc = S + 4 * t; k = KF + 16 * t + 4 * i
            cin = '0' if i == 0 else f'v[{acc}:{acc+3}]'
            g.A(f'v_mfma_f32_16x16x32_bf16 v[{acc}:{acc+3}], v[{k}:{k+3}], v[{QF+4*i}:{QF+4*i+3}], {cin}')
    for i in range(4): g.A(f'v_mov_b32_dpp v{S+i}, v{S+4+i} quad_perm:[0,1,2,3] row_mask:0xf bank_mask:0xc')
    sr = [S + i for i in range(4)]
    tm = [VD + 24, VD + 25]
    if cfg.get('mimic', 1):
        rb_list(g, sr, tm)
        for r in sr: g.A(f'v_mul_f32 v{r}, {SCALE:#x}, v{r}')
        rb_list(g, sr, tm)
    else:
        for r in sr: g.A(f'v_mul_f32 v{r}, {SCALE:#x}, v{r}')
    m = VD + 28
    g.A(f'v_max3_f32 v{m}, v{S}, v{S+1}, v{S+2}\nv_max_f32 v{m}, v{m}, v{S+3}\nv_max_f32_dpp v{m}, v{m}, v{m} row_ror:8 {DPPF}')
    allreduce_kq(g, [m], [m + 1], 'max')
    g.A(f's_mov_b64 exec, 0xff\nds_write_b32 v{VMW}, v{m}\ns_mov_b64 exec, -1')
    g.wait('v0')
    barrier(g)
    g.A(f'ds_read_b128 v[{VD}:{VD+3}], v{VMX}\nds_read_b128 v[{VD+4}:{VD+7}], v{VMX} offset:16')
    tr_reads(trs[:8]); g.A('s_waitcnt lgkmcnt(8)')
    g.A(f'v_max3_f32 v{m}, v{VD}, v{VD+1}, v{VD+2}\nv_max3_f32 v{m+1}, v{VD+3}, v{VD+4}, v{VD+5}\nv_max3_f32 v{m}, v{m}, v{VD+6}, v{VD+7}\nv_max_f32 v{m}, v{m}, v{m+1}')
    g.A(f'v_mul_f32 v{m}, s{SLG}, v{m}\nv_and_or_b32 v{m}, v{m}, s{SMASK}, v{VTAG}')
    for r in sr: g.A(f'v_fma_f32 v{r}, v{r}, s{SLG}, -v{m}')
    for r in sr: g.A(f'v_exp_f32 v{r}, v{r}')
    g.A(f'v_cvt_pk_bf16_f32 v{tm[0]}, v{S}, v{S+1}\nv_cvt_pk_bf16_f32 v{tm[1]}, v{S+2}, v{S+3}')
    g.A(f'ds_write2_b32 v{VPW}, v{tm[0]}, v{tm[1]} offset0:0 offset1:32')
    g.wait('v1'); g.stamp(11)
    barrier(g)
    for j in range(4):
        g.A(f'ds_read_b128 v[{PF+4*j}:{PF+4*j+3}], v{VPR} offset:{j*1024}')
        tr_reads([(2 * j, 1), (2 * j + 1, 1)])
    acc = VACC[1]
    for j in range(4):
        g.A(f's_waitcnt lgkmcnt({9 - 3*j})')
        g.A(f'v_smfmac_f32_16x16x64_bf16 v[{acc}:{acc+3}], v[{PF+4*j}:{PF+4*j+3}], v[{VFR+8*j}:{VFR+8*j+7}], v{VPI}')
    def fold(a):
        g.A(f'v_permlane32_swap_b32 v{a}, v{a+2}\nv_permlane32_swap_b32 v{a+1}, v{a+3}\nv_add_f32 v{a}, v{a}, v{a+2}\nv_add_f32 v{a+1}, v{a+1}, v{a+3}')
        g.A(f'v_and_or_b32 v{a}, v{a}, s{SMASK}, v{VTAG}\nv_and_or_b32 v{a+1}, v{a+1}, s{SMASK}, v{VTAG}')
    def st(reg, va, sb, off, fl): g.A(f'buffer_store_dword v{reg}, v{va}, s[{S_WS}:{S_WS+3}], s{sb} offen offset:{off}{fl}')
    loc = cfg.get('local', 1)
    g.A(f's_cmp_lg_u32 s{SW}, 7\ns_cbranch_scc1 L_B_noml')
    for j in range(4):
        cin = '0' if j == 0 else f'v[{LACC}:{LACC+3}]'
        g.A(f'v_mfma_f32_16x16x32_bf16 v[{LACC}:{LACC+3}], v[{ONES}:{ONES+3}], v[{PF+4*j}:{PF+4*j+3}], {cin}')
    g.A('L_B_noml:')
    g.A('s_nop 5')
    fold(acc)
    if loc: st(acc, VOS, SOB, 0, ''); st(acc + 1, VOS, SOB, 512, '')
    g.A(f's_cmp_lg_u32 s{SW}, 7\ns_cbranch_scc1 L_B_noml2')
    g.A(f'v_add_f32_dpp v{m+1}, v{LACC}, v{LACC} row_ror:8 {DPPF}\nv_mov_b32 v{m+2}, v{VEP}\nv_mov_b32 v{m+3}, v{VEP}\nv_lshlrev_b32 v{VT}, 4, v{VL}')
    g.A(f'v_and_or_b32 v{m+1}, v{m+1}, s{SMASK}, v{VTAG}')
    for yy in ([0, 1] if loc else [1]):
        fl = ' sc1' if yy else ''
        if yy and loc:
            g.A(f's_add_u32 s{SMB}, s{SMB}, {YOFF:#x}')
            if cfg.get('h3pos', 1) == 1: hint_set(g, 0, 7)
            g.sleep('d_y', 10)
        g.A(f's_mov_b64 exec, 0xff\nbuffer_store_dwordx4 v[{m}:{m+3}], v{VT}, s[{S_WS}:{S_WS+3}], s{SMB} offen{fl}\ns_mov_b64 exec, -1')
    g.A('L_B_noml2:')
    if loc: g.A(f's_add_u32 s{SOB}, s{SOB}, {YOFF:#x}')
    g.stamp(3)
    g.A(f's_cmp_ge_u32 s{SW}, 2\ns_cbranch_scc1 L_B_nocomb')
    O0, O1, ML, M, F, OT = VD, VD + 4, VD + 8, VD + 16, VD + 18, VD + 24
    def ml_math():
        g.A(f'v_max_f32 v{M}, v{ML}, v{ML+4}\nv_max_f32_dpp v{M}, v{M}, v{M} row_ror:8 {DPPF}')
        allreduce_kq(g, [M], [M + 1], 'max')
        g.A(f'v_sub_f32 v{F}, v{ML}, v{M}\nv_sub_f32 v{F+2}, v{ML+4}, v{M}\nv_exp_f32 v{F}, v{F}\nv_exp_f32 v{F+2}, v{F+2}')
        g.A(f'v_mul_f32 v{M}, v{F}, v{ML+1}\nv_fmac_f32 v{M}, v{F+2}, v{ML+5}')
    def scale(dst, src, f, first):
        for i in (0, 2):
            if first: g.A(f'v_pk_mul_f32 v[{dst+i}:{dst+i+1}], v[{src+i}:{src+i+1}], v[{f}:{f+1}] op_sel_hi:[1,0]')
            else: g.A(f'v_pk_fma_f32 v[{dst+i}:{dst+i+1}], v[{src+i}:{src+i+1}], v[{f}:{f+1}], v[{dst+i}:{dst+i+1}] op_sel_hi:[1,0,1]')
    vm_keep = list(g.vm)
    def ycopy(): st(acc, VOS, SOB, 0, ' sc1'); st(acc + 1, VOS, SOB, 512, ' sc1')
    if not loc: ycopy()
    def mlchk():
        g.A(f'v_bitop3_b32 v{VT}, v{VT}, v{ML+1}, v{VTAG} bitop3:0xf6\nv_bitop3_b32 v{VT}, v{VT}, v{ML+5}, v{VTAG} bitop3:0xf6')
        g.A(f'v_xor_b32 v{M}, v{ML+2}, v{VEP}\nv_bitop3_b32 v{M}, v{M}, v{ML+6}, v{VEP} bitop3:0xf6\nv_min_u32 v{M}, 1, v{M}\nv_or_b32 v{VT}, v{VT}, v{M}')
    poll(g, [(ML, 4, VGM, O_ML, 0), (ML + 4, 4, VGM, O_ML, 1024), (O0, 4, VGO, O_OL, 0), (O1, 4, VGO, O_OL + 0x8000, 0)], True, 0, mid={1: mlchk}, onfail=ycopy); g.stamp(10)
    ml_math()
    scale(OT, O0, F, True); scale(OT, O1, F + 2, False)
    g.A(f'v_add_f32_dpp v{M}, v{M}, v{M} row_ror:8 {DPPF}')
    g.A(f'v_permlane32_swap_b32 v{OT}, v{OT+2}\nv_permlane32_swap_b32 v{OT+1}, v{OT+3}\nv_mov_b32 v{M+1}, v{M}')
    g.A(f'v_add_f32 v{OT}, v{OT}, v{OT+2}\nv_add_f32 v{OT+1}, v{OT+1}, v{OT+3}\nv_permlane16_swap_b32 v{M}, v{M+1}\nv_add_f32 v{M}, v{M}, v{M+1}')
    g.A(f'v_permlane16_swap_b32 v{OT}, v{OT+1}\nv_mov_b32 v{M+1}, v{M}\nv_add_f32 v{OT}, v{OT}, v{OT+1}\nv_permlane32_swap_b32 v{M}, v{M+1}\nv_add_f32 v{M}, v{M}, v{M+1}')
    g.A(f'v_add_f32_dpp v{OT}, v{OT}, v{OT} row_ror:8 {DPPF}\nv_rcp_f32 v{M}, v{M}\nv_mul_f32 v{OT}, v{OT}, v{M}')
    g.A(f'v_cvt_pk_bf16_f32 v{OT}, 0, v{OT}\nv_or_b32 v{OT}, v{OT}, v{VTAG}')
    g.A(f's_mov_b32 exec_lo, 0x00ff00ff\ns_mov_b32 exec_hi, 0x00ff00ff'); st(OT, VCS, SH, 0, ' sc1'); g.A('s_mov_b64 exec, -1')
    if cfg.get('h3pos', 1) == 2: hint_set(g, 0, 0)
    g.A('s_branch L_B_combd')
    g.A('L_B_nocomb:')
    if loc:
        g.A(f's_cmp_eq_u32 s{SW}, 7\ns_cbranch_scc1 L_B_combd')
        g.sleep('d_y', 10)
    g.A('L_B_combd:')
    ycopy()
    g.vm = vm_keep
    g.A('s_barrier'); g.stamp(4, True)
    g.A(f's_cmp_ge_u32 s{SU}, 14\ns_cbranch_scc1 L_B_spare')
    vm_save = list(g.vm); pos_save = pos[0]
    emit(cfg.get('B_e4', 22), cfg.get('B_w2', 4))
    g.wait('p1b')
    gemv(g, [VS], [[W1B], [W1B + 8]], [ACC2[0]])
    g.A(f's_lshl_b32 s{ST2}, s{SU}, 10\ns_add_u32 s{ST2}, s{ST2}, s{SLOC}\ns_add_u32 s{ST2}, s{ST2}, {O_MOD + 0x8000:#x}')
    red_write(g, [ACC2[0]], 0)
    barrier(g)
    publish(g, 0, 1, ST2, True); g.stamp(4)
    emit(28, cfg.get('B_w3', 4))
    g.A(f's_lshl_b32 s{ST2}, s{SU}, 4\ns_add_u32 s{ST2}, s{ST2}, s{SXC}\ns_lshl_b32 s{ST2}, s{ST2}, 10\ns_add_u32 s{ST2}, s{ST2}, {HIDP:#x}')
    acc_off(g, ST2, 8192)
    zero_acc(g, VACC)
    if cfg.get('prof'): g.wait('w1'); g.stamp(5)
    poll(g, [(VX, 1, VH2, O_H2, 0)], True, cfg.get('sl_h2', 2)); g.stamp(7)
    g.A(f'v_lshrrev_b32 v{VX}, 16, v{VX}')
    gemv(g, [VX], [[W1 + 16 * t, W1 + 16 * t + 8] for t in range(2)], VACC)
    red_write(g, VACC, 2)
    barrier(g)
    if cfg.get('h5early', 1): hint_set(g, 1, 6)
    publish(g, 2, 2, ST2, False, fence=False)
    if not cfg.get('h5early', 1): hint_set(g, 1, 6)
    g.stamp(8)
    finish(g)
    g.A('L_B_spare:')
    g.vm = vm_save
    g.A(f's_cmp_eq_u32 s{SU}, 14\ns_cbranch_scc1 L_B_ln')
    g.A(f's_lshl_b32 s{ST1}, s{SW}, 5\ns_add_u32 s{ST1}, s{ST1}, {6*256}\nbuffer_load_ushort v{VC2}, v{VE}, s[{S_CC}:{S_CC+3}], s{ST1} offen'); g.issued('c2')
    g.A(f'v_subrev_u32 v{VA5}, {128*12288}, v{VA1B}')
    oth = [lambda win, t=t, h=h: wload(g, 'p1b', W1 + 8 * t + 4 * h, VA5, S_MOD, (8 * t + 2 * h) * 12288 + 8192, 0, win) for t in range(2) for h in range(2)]
    for f in p1b_l[pos_save - 16:] + oth: f(4)
    g.wait('c2'); silu(g, VC2, VS + 1)
    g.wait('p1b')
    gemv(g, [VS + 1], [[W1], [W1 + 8]], [ACC2[0]])
    gemv(g, [VS], [[W1B], [W1B + 8]], [ACC2[1]])
    g.A(f's_add_u32 s{ST2}, s{SLOC}, {O_MOD + 0x8000 + 14 * 1024:#x}')
    acc_off(g, ST2, 1024)
    red_write(g, ACC2, 0)
    barrier(g)
    publish(g, 0, 2, ST2, True, fence=False); g.stamp(4)
    finish(g)
    g.A('L_B_ln:')
    g.vm = []
    load_xr(g, VXR)
    g.wait('xr')
    GA, SB, CB, GB, X2 = 80, 84, 88, 92, 96
    VST, VSR, VSS, VSG = 100, 101, 102, 103
    g.A(f'v_lshlrev_b32 v{X2}, 16, v{VXR}')
    g.A(f's_lshl_b32 s{ST0}, s{SW}, 3\ns_add_u32 s{ST0}, s{ST0}, {L_STAT}\nv_lshl_add_u32 v{VST}, v{VB}, 6, s{ST0}\nv_lshrrev_b32 v{VD}, 5, v{VL}\nv_lshl_add_u32 v{VST}, v{VD}, 2, v{VST}')
    g.A(f'v_and_b32 v{VSR}, 0x38, v{VL}\nv_lshl_add_u32 v{VSR}, v{VB}, 6, v{VSR}\nv_add_u32 v{VSR}, {L_STAT}, v{VSR}')
    g.A(f'v_bfe_u32 v{VSS}, v{VL}, 3, 2\nv_and_b32 v{VT}, 1, v{VL}\nv_lshl_add_u32 v{VSS}, v{VT}, 2, v{VSS}\nv_lshlrev_b32 v{VSS}, 10, v{VSS}\nv_lshl_add_u32 v{VSS}, v{VB}, 3, v{VSS}\nv_lshl_add_u32 v{VSS}, v{VD}, 2, v{VSS}')
    g.A(f'v_lshrrev_b32 v{VSG}, 3, v{VL}\nv_lshlrev_b32 v{VSG}, 7, v{VSG}\nv_lshl_add_u32 v{VSG}, v{VB}, 3, v{VSG}')
    g.A(f's_lshl_b32 s{ST2}, s{SXC}, 7\ns_add_u32 s{ST2}, s{ST2}, {STP:#x}\ns_lshl_b32 s{ST3}, s{SXC}, 10\ns_add_u32 s{ST3}, s{ST3}, {STP:#x}\ns_add_u32 s{SH}, s{SLOC}, {O_H2:#x}')
    g.A(f's_lshl_b32 s{ST1}, s{SXC}, 8\ns_lshl_b32 s{ST0}, s{SW}, 5\ns_add_u32 s{ST1}, s{ST1}, s{ST0}')
    poll(g, [(GA, 4, VG16, O_MOD + 0x4000, 0), (SB, 4, VG16, O_MOD + 0x6000, 0)], True, 1); g.stamp(5)
    rscatter(g, [GA, SB]); rb_pair(g, GA, SB, VD)
    poll(g, [(VD, 4, VG16, O_AT, 0), (VD + 4, 4, VG16, O_AT + 0x2000, 0)], True, cfg.get('sl_l', 0)); g.stamp(6)
    for i in range(4): g.A(f'v_add_f32 v{VD+i}, v{VD+i}, v{VD+4+i}')
    rscatter(g, [VD])
    rb(g, VD)
    g.A(f'v_mul_f32 v{VD}, v{VD}, v{GA}'); rb(g, VD)
    g.A(f'v_add_f32 v{X2}, v{X2}, v{VD}'); rb(g, X2)
    g.A(f'v_mov_b32 v{VD}, v{X2}\nv_mul_f32 v{VD+1}, v{X2}, v{X2}')
    g.A(f'v_permlane32_swap_b32 v{VD}, v{VD+1}\nv_add_f32 v{VD}, v{VD}, v{VD+1}\nv_mov_b32 v{VD+1}, v{VD}\nv_permlane16_swap_b32 v{VD}, v{VD+1}\nv_add_f32 v{VD}, v{VD}, v{VD+1}')
    for mode in ['quad_perm:[1,0,3,2]', 'quad_perm:[2,3,0,1]']:
        g.A(f'v_add_f32_dpp v{VD}, v{VD}, v{VD} {mode} {DPPF}')
    g.A(f's_mov_b32 exec_lo, 0x11\ns_mov_b32 exec_hi, 0x11\nds_write_b32 v{VST}, v{VD}\ns_mov_b64 exec, -1')
    barrier(g)
    g.A(f's_cmp_lg_u32 s{SW}, 0\ns_cbranch_scc1 L_B_nostat')
    g.A(f'ds_read_b64 v[{VD+8}:{VD+9}], v{VSR}\ns_waitcnt lgkmcnt(0)')
    pair_reduce_s3(g, VD + 8, VD + 10)
    g.A(f'v_and_or_b32 v{VD+8}, v{VD+8}, s{SMASK}, v{VTAG}')
    g.A(f's_mov_b32 exec_lo, 0x33333333\ns_mov_b32 exec_hi, 0x33333333\nbuffer_store_dword v{VD+8}, v{VSS}, s[{S_WS}:{S_WS+3}], s{ST2} offen sc1\ns_mov_b64 exec, -1')
    g.A('L_B_nostat:')
    g.stamp(7)
    poll(g, [(CB, 4, VG16, O_MOD + 0x8000, 0)], True, 1); g.stamp(4)
    rscatter(g, [CB]); rb(g, CB)
    g.A(f'v_add_f32 v{CB}, 1.0, v{CB}'); rb(g, CB)
    g.sleep('d4', 4)
    SS = VD
    poll(g, [(SS, 2, VSG, ST3, 0)], False, cfg.get('r4', 3)); g.stamp(11)
    pair_reduce_s3(g, SS, SS + 2)
    g.A(f'v_mov_b32 v{SS+1}, v{SS}\nv_permlane32_swap_b32 v{SS}, v{SS+1}')
    ln_scalars(g, SS, SS + 1, SS + 2)
    g.A(f'v_rcp_f32 v{SS+1}, v{SS+1}\nv_sub_f32 v{SS}, v{X2}, v{SS}'); rb(g, SS)
    g.A(f'v_mul_f32 v{SS}, v{SS}, v{SS+1}'); rb(g, SS)
    g.A(f'v_mul_f32 v{SS}, v{SS}, v{CB}'); rb(g, SS)
    g.A(f'v_add_f32 v{SS}, v{SS}, v{SB}\nv_cvt_pk_bf16_f32 v{SS}, 0, v{SS}\nv_or_b32 v{SS}, v{SS}, v{VTAG}')
    store1(g, SS, VH2, SH, True); g.stamp(8)
    if cfg.get('touch_out', 0): g.A(f'buffer_load_ushort v104, v{VE}, s[{S_OUT}:{S_OUT+3}], s{ST1} offen')
    poll(g, [(GB, 4, VG16, O_MOD + 0xA000, 0)], True, 1)
    rscatter(g, [GB]); rb(g, GB)
    poll(g, [(VD, 4, VG16, O_OUT, 0), (VD + 4, 4, VG16, O_OUT + 0x2000, 0)], True, cfg.get('sl_l', 0)); g.stamp(9)
    for i in range(4): g.A(f'v_add_f32 v{VD+i}, v{VD+i}, v{VD+4+i}')
    rscatter(g, [VD])
    rb(g, VD)
    g.A(f'v_mul_f32 v{VD}, v{VD}, v{GB}'); rb(g, VD)
    g.A(f'v_add_f32 v{VD}, v{X2}, v{VD}\nv_cvt_pk_bf16_f32 v{VD}, v{VD}, v{VD}')
    g.A(f's_mov_b32 exec_lo, 0x00ff00ff\ns_mov_b32 exec_hi, 0x00ff00ff')
    g.A(f'buffer_store_short v{VD}, v{VE}, s[{S_OUT}:{S_OUT+3}], s{ST1} offen')
    g.A('s_mov_b64 exec, -1')
    if 'diag' in cfg:
        k = cfg['diag']
        g.stamp(10)
        g.A(f's_add_u32 s{ST2}, s{SST+2*k}, 4000')
        g.A(f'L_diag:\ns_memrealtime s[80:81]\ns_waitcnt lgkmcnt(0)\ns_sub_u32 s{ST3}, s80, s{ST2}\ns_cmp_lt_i32 s{ST3}, 0\ns_cbranch_scc1 L_diag')
    g.A(f's_or_b32 s{ST0}, s{SXC}, s{SW}\ns_cmp_lg_u32 s{ST0}, 0\ns_cbranch_scc1 L_B_done')
    g.A(f's_mov_b64 exec, 1\nbuffer_store_dword v{VEP}, v{VL}, s[{S_WS}:{S_WS+3}], 0 offen sc1\ns_mov_b64 exec, -1')
    g.A('L_B_done:'); g.stamp(10)
    finish(g)

HEAD = open('adaLN_cond__sliding_block_cached__dense_activation_relu__decode.s.ref').read().split('; Override launch')[0]

def generate(cfg):
    g = G(cfg)
    prologue(g)
    vm0 = list(g.vm)
    g.A('s_cmp_ge_u32 s2, 128\ns_cbranch_scc1 L_progB')
    prog_A(g, True); vmA = list(g.vm)
    g.A('L_progB:'); g.vm = list(vm0)
    prog_B(g); g.frozen = set()
    g.A('L_progA:'); g.vm = vmA
    prog_A(g, False)
    g.A('L_exit:\ns_endpgm')
    body = pad_hazards(g.L)
    out = [HEAD.rstrip(), f'; @launch grid=(256,1,1) block=(512,1,1) lds={LDS_BYTES}',
           '.amdgcn_target "amdgcn-amd-amdhsa--gfx950"', '.text', f'.globl {KNAME}', '.p2align 8', f'.type {KNAME},@function', f'{KNAME}:']
    out += [(l if l.endswith(':') else '    ' + l) for l in body]
    out += ['.section .rodata,"a"', '.p2align 6', f'.amdhsa_kernel {KNAME}', '  .amdhsa_next_free_vgpr 256', '  .amdhsa_next_free_sgpr 102',
            '  .amdhsa_accum_offset 256', '  .amdhsa_group_segment_fixed_size 0', '  .amdhsa_kernarg_size 104', '  .amdhsa_user_sgpr_count 2',
            '  .amdhsa_user_sgpr_kernarg_segment_ptr 1', '  .amdhsa_system_sgpr_workgroup_id_x 1', '  .amdhsa_float_denorm_mode_32 3', '.end_amdhsa_kernel', '']
    return '\n'.join(out)

if __name__ == '__main__':
    cfg = {}
    for a in sys.argv[2:]:
        k, v = a.split('='); cfg[k] = int(v)
    open(sys.argv[1], 'w').write(generate(cfg))
```
